```python
import torch

def _softmax(x, axis=-1):
    return torch.softmax(x, dim=axis)

def _gelu(x):
    return torch.nn.functional.gelu(x, approximate='tanh')

def _silu(x):
    return torch.nn.functional.silu(x)

def _sigmoid(x):
    return torch.sigmoid(x)

def _layernorm(x, axis=-1, eps=1e-05):
    m = x.mean(dim=axis, keepdim=True)
    v = x.var(dim=axis, keepdim=True, unbiased=False)
    return (x - m) / torch.sqrt(v + eps)

def _scatter_add(tgt, idx, src, axis=0):
    return tgt.clone().index_add_(axis, idx, src)

def _segment_sum(src, seg, n):
    out = torch.zeros((n,) + src.shape[1:], dtype=src.dtype)
    return out.index_add_(0, seg, src)

def _pad(x, pw):
    flat = tuple((v for pair in reversed(pw) for v in pair))
    return torch.nn.functional.pad(x, flat)
kernel_name = 'standalone__tensor_product_equiv_tfn__graph'

def setup_inputs():

    _w = lambda a: (lambda t: t.to(torch.bfloat16) if t.is_floating_point() else t)(torch.as_tensor(a))
    N, deg, C, L, DE = (10000, 32, 128, 1, 4)
    E = N * deg
    M = (L + 1) ** 2
    src = (lambda lo, hi, *s: torch.randint(lo, hi, s))(0, N, E).to(torch.int64)
    dst = (lambda lo, hi, *s: torch.randint(lo, hi, s))(0, N, E).to(torch.int64)
    r = (lambda *s: torch.randn(*s, dtype=torch.bfloat16) * 0.05)(E, 3)
    r = r / (torch.linalg.norm(r, dim=-1, keepdim=True) + 1e-09)
    rx, ry, rz = (r[:, 0].clone(), r[:, 1].clone(), r[:, 2].clone())
    Ys = [torch.ones((E, 1), dtype=float)]
    if L >= 1:
        Ys.append(r.to(float))
    if L >= 2:
        Ys.append(torch.stack([2 * rx * ry, 2 * ry * rz, (3 * rz * rz - 1.0) / (lambda _x: torch.sqrt(torch.as_tensor(_x)))(3.0), 2 * rx * rz, rx * rx - ry * ry], dim=-1).to(float))
    for _l in range(3, L + 1):
        Ys.append(((lambda *s: torch.randn(*s, dtype=torch.bfloat16) * 0.05)(E, 2 * _l + 1) * 0.3).to(float))
    Y = torch.cat(Ys, dim=-1)
    cg = torch.zeros((M, M, M), dtype=float)
    off = [_l * _l for _l in range(L + 2)]
    for l1 in range(L + 1):
        for l2 in range(L + 1):
            for l3 in range(abs(l1 - l2), min(L, l1 + l2) + 1):
                d1, d2, d3 = (2 * l1 + 1, 2 * l2 + 1, 2 * l3 + 1)
                cg[off[l1]:off[l1 + 1], off[l2]:off[l2 + 1], off[l3]:off[l3 + 1]] = (lambda *s: torch.randn(*s, dtype=torch.bfloat16) * 0.05)(d1, d2, d3) / (lambda _x: torch.sqrt(torch.as_tensor(_x)))(float(d1 * d2))
    return {'x': _w((lambda *s: torch.randn(*s, dtype=torch.bfloat16) * 0.05)(N, C, M) * 0.2), 'src': _w(src), 'dst': _w(dst), 'Y': _w(Y), 'edge_feat': _w((lambda *s: torch.randn(*s, dtype=torch.bfloat16) * 0.05)(E, DE)), 'w_rad': _w((lambda *s: torch.randn(*s, dtype=torch.bfloat16) * 0.05)(DE, C) * (1.0 / max(1.0, DE) ** 0.5)), 'cg': _w(cg), 'w_mix': _w((lambda *s: torch.randn(*s, dtype=torch.bfloat16) * 0.05)(C, C) * (1.0 / max(1.0, C) ** 0.5))}

def reference(x, src, dst, Y, edge_feat, w_rad, cg, w_mix):
    N, C, M = (x.shape[0], x.shape[1], x.shape[2])
    R = _silu(edge_feat @ w_rad)
    xs = x[src]
    tp = torch.einsum('eci,ef,ifo->eco', xs, Y, cg)
    msg = R[:, :, None] * tp
    agg = _segment_sum(msg.reshape(-1, C * M), dst, N).reshape(N, C, M)
    return torch.einsum('ncm,cd->ndm', agg, w_mix)
```

```python
import sys

CFG = dict(NX=16, HILO=True, STAMP=False, TOUCH=False)
for a in sys.argv[2:]:
    k, v = a.split('=')
    CFG[k] = eval(v)

N, E, C = 10000, 320000, 128
G = 125
CH = 2560
NBIN = 256
TAB_OFF = 0
META_OFF = 0x40000
PAY_OFF = 0x200000
WFRAG_OFF = 0x800000
STAMP_OFF = 0x900000

out = []
def L(s=''):
    out.append(s)
def C_(s):
    out.append('    ; ' + s)
def I(s):
    out.append('    ' + s)

def srd(base, lo, hi, nrec, stride=0):
    I(f's_mov_b32 s{base}, s{lo}')
    I(f's_and_b32 s{base+1}, s{hi}, 0xffff')
    if stride:
        I(f's_or_b32 s{base+1}, s{base+1}, {hex(stride << 16)}')
    if isinstance(nrec, int):
        I(f's_mov_b32 s{base+2}, {hex(nrec)}')
    else:
        I(f's_mov_b32 s{base+2}, {nrec}')
    I(f's_mov_b32 s{base+3}, 0x20000')

def stamp(k, ws_lo, tmp):
    if not CFG['STAMP']:
        return
    I(f's_memrealtime s[{tmp}:{tmp+1}]')
    I('s_waitcnt lgkmcnt(0)')
    I(f'v_mov_b32 v252, s{tmp}')
    I(f'v_mov_b32 v253, s{tmp+1}')
    I(f's_mov_b64 s[{tmp}:{tmp+1}], exec')
    I('s_mov_b64 exec, 1')
    I(f'global_store_dwordx2 v254, v[252:253], s[{ws_lo}:{ws_lo+1}] offset:{k*8}')
    I(f's_mov_b64 exec, s[{tmp}:{tmp+1}]')

def dpp_scan_add(regs, op='v_add_u32', rows_only=False):
    steps = ['row_shr:1', 'row_shr:2', 'row_shr:4', 'row_shr:8']
    for st in steps:
        I('s_nop 1')
        for r in regs:
            I(f'{op}_dpp v{r}, v{r}, v{r} {st} row_mask:0xf bank_mask:0xf')
    if not rows_only:
        I('s_nop 1')
        for r in regs:
            I(f'{op}_dpp v{r}, v{r}, v{r} row_bcast:15 row_mask:0xa bank_mask:0xf')
        I('s_nop 1')
        for r in regs:
            I(f'{op}_dpp v{r}, v{r}, v{r} row_bcast:31 row_mask:0xc bank_mask:0xf')
    I('s_nop 1')

K2_LDS = None
hdr_pos = len(out)
L('')
L('')
L('.amdgcn_target "amdgcn-amd-amdhsa--gfx950"')
L('.text')

K1_HIST, K1_OFFS, K1_PAY, K1_META = 0, 1024, 2048, 2048 + 40960
K1_LDS = K1_META + 10240
L('.globl tfn_sort_kernel')
L('.p2align 8')
L('.type tfn_sort_kernel,@function')
L('tfn_sort_kernel:')
I(f's_cmp_ge_u32 s2, {G}')
I('s_cbranch_scc1 K1_END')
I('s_load_dwordx4 s[4:7], s[0:1], 8')
I('s_load_dwordx4 s[8:11], s[0:1], 24')
I('s_load_dwordx2 s[12:13], s[0:1], 80')
I('s_load_dwordx2 s[14:15], s[0:1], 56')
I('s_mul_i32 s16, s2, 10240')
I('s_lshl_b32 s17, s16, 1')
I('v_lshlrev_b32 v1, 4, v0')
I('v_add_u32 v2, s16, v1')
I('v_lshlrev_b32 v3, 5, v0')
I('v_add_u32 v3, s17, v3')
I('v_mov_b32 v4, 0')
I('v_lshlrev_b32 v5, 2, v0')
I('s_waitcnt lgkmcnt(0)')
I('global_load_dwordx4 v[8:11], v2, s[6:7]')
I('global_load_dwordx4 v[12:15], v2, s[4:5]')
I('global_load_dwordx4 v[16:19], v3, s[8:9]')
I('global_load_dwordx4 v[20:23], v3, s[8:9] offset:16')
I('global_load_dwordx4 v[24:27], v3, s[10:11]')
I('global_load_dwordx4 v[28:31], v3, s[10:11] offset:16')
I('v_cmp_gt_u32 vcc, 256, v0')
I('s_and_saveexec_b64 s[18:19], vcc')
I(f'ds_write_b32 v5, v4 offset:{K1_HIST}')
I('s_mov_b64 exec, s[18:19]')
I(f's_add_u32 s20, s12, {hex(TAB_OFF)}'); I('s_addc_u32 s21, s13, 0')
I(f's_add_u32 s22, s12, {hex(META_OFF)}'); I('s_addc_u32 s23, s13, 0')
I(f's_add_u32 s24, s12, {hex(PAY_OFF)}'); I('s_addc_u32 s25, s13, 0')
I(f's_add_u32 s26, s12, {hex(WFRAG_OFF)}'); I('s_addc_u32 s27, s13, 0')
I('s_cmp_ge_u32 s2, 32')
I('s_cbranch_scc1 K1_NOWF')
I('v_cmp_gt_u32 vcc, 64, v0')
I('s_and_saveexec_b64 s[18:19], vcc')
I('s_cbranch_execz K1_WFDONE')
C_('piece (cp,t,ks)=wg, lane l: w_mix[32ks+8(l/16)+jj][32cp+2(l%16)+t]')
I('s_lshr_b32 s28, s2, 3')
I('s_lshr_b32 s29, s2, 2')
I('s_and_b32 s29, s29, 1')
I('s_and_b32 s30, s2, 3')
I('s_lshl_b32 s28, s28, 6')
I('s_lshl_b32 s29, s29, 1')
I('s_add_u32 s28, s28, s29')
I('s_lshl_b32 s30, s30, 13')
I('s_add_u32 s28, s28, s30')
I('v_lshrrev_b32 v32, 4, v0')
I('v_lshlrev_b32 v32, 11, v32')
I('v_and_b32 v33, 15, v0')
I('v_lshlrev_b32 v33, 2, v33')
I('v_add3_u32 v32, v32, v33, s28')
for jj in range(8):
    I(f'global_load_ushort v{34+jj}, v32, s[14:15] offset:{jj*256}')
I('s_lshl_b32 s28, s2, 10')
I('v_lshl_add_u32 v33, v0, 4, s28')
I('s_waitcnt vmcnt(0)')
for q in range(4):
    I(f'v_lshl_or_b32 v{44+q}, v{35+2*q}, 16, v{34+2*q}')
I('global_store_dwordx4 v33, v[44:47], s[26:27]')
L('K1_WFDONE:')
I('s_mov_b64 exec, s[18:19]')
L('K1_NOWF:')
I('s_waitcnt lgkmcnt(0)')
I('s_barrier')
I('s_waitcnt vmcnt(0)')
I('s_movk_i32 s28, 1677')
I('v_mov_b32 v6, 1')
for k in range(4):
    I(f'v_mul_u32_u24 v{32+k}, s28, v{8+k}')
    I(f'v_lshrrev_b32 v{32+k}, 16, v{32+k}')
    I(f'v_lshlrev_b32 v{32+k}, 2, v{32+k}')
for k in range(4):
    I(f'ds_add_rtn_u32 v{36+k}, v{32+k}, v6 offset:{K1_HIST}')
for k in range(4):
    I(f'v_lshl_or_b32 v{40+k}, v{8+k}, 14, v{12+k}')
I('s_waitcnt lgkmcnt(0)')
I('s_barrier')
I('v_and_b32 v7, 63, v0')
I('v_lshlrev_b32 v44, 4, v7')
I(f'ds_read_b128 v[48:51], v44 offset:{K1_HIST}')
I('s_waitcnt lgkmcnt(0)')
I('v_add_u32 v52, v48, v49')
I('v_add_u32 v53, v52, v50')
I('v_add_u32 v54, v53, v51')
I('v_mov_b32 v55, v54')
dpp_scan_add([55])
I('v_sub_u32 v56, v55, v54')
I('v_add_u32 v57, v56, v48')
I('v_add_u32 v58, v56, v52')
I('v_add_u32 v59, v56, v53')
I(f'ds_write_b128 v44, v[56:59] offset:{K1_OFFS}')
I('v_cmp_gt_u32 vcc, 64, v0')
I('s_and_saveexec_b64 s[18:19], vcc')
I('s_cbranch_execz K1_NOTAB')
for k in range(4):
    I(f'v_lshl_or_b32 v{60+k}, v{56+k}, 16, v{48+k}')
I('s_lshl_b32 s28, s2, 10')
I('v_add_u32 v45, s28, v44')
I('global_store_dwordx4 v45, v[60:63], s[20:21]')
L('K1_NOTAB:')
I('s_mov_b64 exec, s[18:19]')
I('s_waitcnt lgkmcnt(0)')
for k in range(4):
    I(f'ds_read_b32 v{48+k}, v{32+k} offset:{K1_OFFS}')
I('s_waitcnt lgkmcnt(0)')
for k in range(4):
    I(f'v_add_u32 v{48+k}, v{48+k}, v{36+k}')
    I(f'v_lshlrev_b32 v{52+k}, 4, v{48+k}')
    I(f'v_lshlrev_b32 v{48+k}, 2, v{48+k}')
for k in range(4):
    I(f'ds_write_b64 v{52+k}, v[{16+2*k}:{17+2*k}] offset:{K1_PAY}')
    I(f'ds_write_b64 v{52+k}, v[{24+2*k}:{25+2*k}] offset:{K1_PAY+8}')
    I(f'ds_write_b32 v{48+k}, v{40+k} offset:{K1_META}')
I('s_waitcnt lgkmcnt(0)')
I('s_barrier')
for i in range(4):
    I(f'ds_read_b128 v[{8+4*i}:{11+4*i}], v1 offset:{K1_PAY + i*10240}')
I(f'ds_read_b128 v[24:27], v1 offset:{K1_META}')
I('s_mul_i32 s28, s2, 40960')
I('v_add_u32 v2, s28, v1')
I('v_add_u32 v3, s16, v1')
for i in range(4):
    I(f's_waitcnt lgkmcnt({4-i})')
    if i > 0:
        I('v_add_u32 v2, 10240, v2')
    I(f'global_store_dwordx4 v2, v[{8+4*i}:{11+4*i}], s[24:25]')
I('s_waitcnt lgkmcnt(0)')
I('global_store_dwordx4 v3, v[24:27], s[22:23]')
L('K1_END:')
I('s_endpgm')

NX = CFG['NX']
LA = 2
BLKSZ = 720
T_O, EF_O, IDX_O, SLOT_O = 0, 512, 640, 704
NBLK = 121
CNT_A, OFFS_A, BLK_A = 0, 512, 1024
AGG_A = BLK_A + NBLK * BLKSZ
AGG_STR = 272
K2_LDS = AGG_A + 160 * AGG_STR
MMAX = (NBLK - 2) * 16 - 248

class VA:
    def __init__(self): self.n = 0
    def __call__(self, k=1, align=1):
        self.n = (self.n + align - 1) // align * align
        r = self.n; self.n += k; return r
va = VA()
vTid = va()
vLane = va()
vL8 = va()
vBlk = va()
vT0 = va(); vT1 = va(); vT2 = va(); vT3 = va()
ACC = va(40, 2)
XR = va(4 * NX, 4)
PAIR = va(32, 2)
TP = va(16, 4)
YY = va(16, 4)
ES = va(8, 2)
TT = va(2, 2)
EF = va(2, 2)
WB = va(8, 2)
WF = va(32, 4)
vSl = va(2, 2)
CGA = va(2, 2)
vMisc = va(8, 2)
NV = va.n
assert NV <= 250, NV
REC_M = XR
REC_P = XR + 8
REC_R = XR + 32
REC_K = XR + 40
REC_S = XR + 48
TPD = PAIR
TPP = PAIR + 16
TPY = PAIR + 24

sWave = 3
SRD_X, SRD_PAY, SRD_META, SRD_TAB, SRD_OUT, SRD_WF = 4, 8, 12, 16, 20, 24
sWS = 28
sN0 = 30; sNB = 31
sM = 32; sMaxC = 33; sK4 = 34; sRbase = 35
sMask = 36
sLen0 = 48
sBase0 = 56
sMyLen = 64; sMyBase = 65; sRem = 66; sSl0 = 67; sSl1 = 68; sTmp = 69; sTmp2 = 70
sOne = 72
sNln2 = 74
sA = 76; sB = 78; sStamp = 80
sSave = 82
sP0 = 84

L('.globl tfn_main_kernel')
L('.p2align 8')
L('.type tfn_main_kernel,@function')
L('tfn_main_kernel:')
I(f's_cmp_ge_u32 s2, {NBIN}')
I('s_cbranch_scc1 K2_END')
I(f's_load_dwordx2 s[{sP0}:{sP0+1}], s[0:1], 0')
I(f's_load_dwordx4 s[{sP0+4}:{sP0+7}], s[0:1], 40')
I(f's_load_dwordx2 s[{sP0+2}:{sP0+3}], s[0:1], 64')
I(f's_load_dwordx2 s[{sWS}:{sWS+1}], s[0:1], 80')
I(f'v_lshrrev_b32 v{vT0}, 6, v0')
I(f'v_and_b32 v{vLane}, 63, v0')
I(f'v_readfirstlane_b32 s{sWave}, v{vT0}')
I(f's_lshl_b32 s{sTmp}, s2, 16')
I(f's_add_u32 s{sTmp}, s{sTmp}, 1676')
I(f's_mov_b32 s{sTmp2}, 2561102')
I(f's_mul_hi_u32 s{sN0}, s{sTmp}, s{sTmp2}')
I(f's_add_u32 s{sTmp}, s{sTmp}, 0x10000')
I(f's_mul_hi_u32 s{sNB}, s{sTmp}, s{sTmp2}')
I(f's_min_u32 s{sNB}, s{sNB}, {N}')
if CFG['STAMP']:
    I(f's_lshl_b32 s{sTmp}, s2, 3')
    I(f's_add_u32 s{sTmp}, s{sTmp}, s{sWave}')
    I(f's_lshl_b32 s{sTmp}, s{sTmp}, 7')
    I(f's_add_u32 s{sTmp}, s{sTmp}, {hex(STAMP_OFF)}')
    I(f'v_mov_b32 v254, s{sTmp}')
I('s_waitcnt lgkmcnt(0)')
stamp(0, sWS, sStamp)
srd(SRD_X, sP0, sP0 + 1, N, stride=1024)
def ws_srd(base, off, size):
    I(f's_add_u32 s{sA}, s{sWS}, {hex(off)}')
    I(f's_addc_u32 s{sA+1}, s{sWS+1}, 0')
    srd(base, sA, sA + 1, size)
ws_srd(SRD_TAB, TAB_OFF, G * 1024)
ws_srd(SRD_META, META_OFF, G * CH * 4)
ws_srd(SRD_PAY, PAY_OFF, G * CH * 16)
ws_srd(SRD_WF, WFRAG_OFF, 32768)
I(f's_lshl_b32 s{sTmp}, s{sNB}, 10')
srd(SRD_OUT, sP0 + 2, sP0 + 3, f's{sTmp}')
I(f's_lshl_b32 s{sTmp}, s2, 2')
I(f'v_lshl_add_u32 v{vT0}, v{vLane}, 10, s{sTmp}')
I(f'v_lshrrev_b32 v{vT1}, 2, v0')
I(f'v_lshl_add_u32 v{vT1}, v{vT1}, 10, s{sTmp}')
I(f'v_add_u32 v{vT2}, 0x10000, v{vT0}')
tabA, tabB, tabO = vMisc, vMisc + 1, vMisc + 2
I(f'buffer_load_dword v{tabA}, v{vT0}, s[{SRD_TAB}:{SRD_TAB+3}], 0 offen')
I(f'buffer_load_dword v{tabB}, v{vT2}, s[{SRD_TAB}:{SRD_TAB+3}], 0 offen')
I(f'buffer_load_dword v{tabO}, v{vT1}, s[{SRD_TAB}:{SRD_TAB+3}], 0 offen')
wr = YY
I(f'v_lshlrev_b32 v{vT0}, 2, v{vLane}')
for kk in range(4):
    I(f'global_load_dword v{wr+kk}, v{vT0}, s[{sP0+4}:{sP0+5}] offset:{kk*256}')
cgr = YY + 4
I(f'v_and_b32 v{vT1}, 3, v{vLane}')
I(f'v_lshlrev_b32 v{vT1}, 5, v{vT1}')
I(f'v_bfe_u32 v{vT2}, v{vLane}, 2, 2')
I(f'v_lshl_add_u32 v{vT1}, v{vT2}, 1, v{vT1}')
for f in range(4):
    I(f'global_load_ushort v{cgr+f}, v{vT1}, s[{sP0+6}:{sP0+7}] offset:{f*8}')
for k in range(40):
    I(f'v_mov_b32 v{ACC+k}, 0')
I(f's_mov_b32 s{sOne}, 1.0'); I(f's_mov_b32 s{sOne+1}, 1.0')
I(f's_mov_b32 s{sNln2}, 0xbf317218'); I(f's_mov_b32 s{sNln2+1}, 0xbf317218')
I(f's_mov_b32 s{sRbase}, 0')
I('s_waitcnt vmcnt(8)')
I(f'v_and_b32 v{vT0}, 0xffff, v{tabA}')
I(f'v_and_b32 v{vT1}, 0xffff, v{tabB}')
I(f'v_add_u32 v{vT2}, v{vT0}, v{vT1}')
I(f'v_max_u32 v{vT3}, v{vT0}, v{vT1}')
for st, rm in [('row_shr:1', 'f'), ('row_shr:2', 'f'), ('row_shr:4', 'f'), ('row_shr:8', 'f'), ('row_bcast:15', 'a'), ('row_bcast:31', 'c')]:
    I('s_nop 0')
    I(f'v_add_u32_dpp v{vT2}, v{vT2}, v{vT2} {st} row_mask:0x{rm} bank_mask:0xf')
    I(f'v_max_u32_dpp v{vT3}, v{vT3}, v{vT3} {st} row_mask:0x{rm} bank_mask:0xf')
I('s_nop 1')
I(f'v_readlane_b32 s{sM}, v{vT2}, 63')
I(f'v_readlane_b32 s{sMaxC}, v{vT3}, 63')
vCnt, vE0 = vMisc + 3, vMisc + 4
I(f'v_and_b32 v{vCnt}, 0xffff, v{tabO}')
I(f'v_lshrrev_b32 v{vE0}, 16, v{tabO}')
I(f'v_lshrrev_b32 v{vT0}, 2, v0')
I(f'v_mul_u32_u24 v{vT0}, {CH}, v{vT0}')
I(f'v_and_b32 v{vT1}, 3, v0')
I(f'v_add3_u32 v{vE0}, v{vE0}, v{vT0}, v{vT1}')
vSub = vMisc + 5
I(f'v_mov_b32 v{vSub}, v{vT1}')
I(f's_mov_b32 s{sK4}, 6')
I(f's_cmp_gt_u32 s{sM}, {MMAX}')
I(f's_cselect_b32 s{sK4}, 3, s{sK4}')
I(f's_cmp_gt_u32 s{sMaxC}, 24')
I(f's_cselect_b32 s{sK4}, 3, s{sK4}')
I('s_waitcnt vmcnt(0)')
NLOG2E = 0xbfb8aa3b
I(f's_mov_b32 s{sTmp}, {hex(NLOG2E)}')
fe, fo = TP, TP + 4
for kk in range(4):
    I(f'v_lshlrev_b32 v{fe+kk}, 16, v{wr+kk}')
    I(f'v_and_b32 v{fo+kk}, 0xffff0000, v{wr+kk}')
for kk in range(4):
    I(f'v_mul_f32 v{fe+kk}, s{sTmp}, v{fe+kk}')
    I(f'v_mul_f32 v{fo+kk}, s{sTmp}, v{fo+kk}')
for par, f in ((0, fe), (1, fo)):
    hi, lo = WB + 4 * par, WB + 4 * par + 2
    I(f'v_cvt_pk_bf16_f32 v{hi}, v{f}, v{f+1}')
    I(f'v_cvt_pk_bf16_f32 v{hi+1}, v{f+2}, v{f+3}')
    t = TP + 8
    I(f'v_lshlrev_b32 v{t}, 16, v{hi}')
    I(f'v_and_b32 v{t+1}, 0xffff0000, v{hi}')
    I(f'v_lshlrev_b32 v{t+2}, 16, v{hi+1}')
    I(f'v_and_b32 v{t+3}, 0xffff0000, v{hi+1}')
    for kk in range(4):
        I(f'v_sub_f32 v{t+kk}, v{f+kk}, v{t+kk}')
    I(f'v_cvt_pk_bf16_f32 v{lo}, v{t}, v{t+1}')
    I(f'v_cvt_pk_bf16_f32 v{lo+1}, v{t+2}, v{t+3}')
I(f'v_lshl_or_b32 v{CGA}, v{cgr+1}, 16, v{cgr}')
I(f'v_lshl_or_b32 v{CGA+1}, v{cgr+3}, 16, v{cgr+2}')
stamp(1, sWS, sStamp)

L('K2_ROUND:')
vMo, vPo = vMisc + 6, vMisc + 7
I(f'v_add_u32 v{vT0}, s{sRbase}, v{vE0}')
I(f'v_lshlrev_b32 v{vMo}, 2, v{vT0}')
I(f'v_lshlrev_b32 v{vPo}, 4, v{vT0}')
I(f'v_add_u32 v{vT1}, s{sRbase}, v{vSub}')
for it in range(6):
    if it == 3:
        I(f's_mov_b64 s[{sMask+6}:{sMask+7}], 0')
        I(f's_mov_b64 s[{sMask+8}:{sMask+9}], 0')
        I(f's_mov_b64 s[{sMask+10}:{sMask+11}], 0')
        I(f's_cmp_eq_u32 s{sK4}, 3')
        I('s_cbranch_scc1 K2_LOADED')
    I(f'v_cmp_lt_u32 vcc, v{vT1}, v{vCnt}')
    I(f's_and_saveexec_b64 s[{sSave}:{sSave+1}], vcc')
    I(f's_mov_b64 s[{sMask+2*it}:{sMask+2*it+1}], exec')
    I(f's_cbranch_execz K2_LD{it}')
    I(f'buffer_load_dword v{REC_M+it}, v{vMo}, s[{SRD_META}:{SRD_META+3}], 0 offen offset:{16*it}')
    I(f'buffer_load_dwordx4 v[{REC_P+4*it}:{REC_P+4*it+3}], v{vPo}, s[{SRD_PAY}:{SRD_PAY+3}], 0 offen offset:{64*it}')
    L(f'K2_LD{it}:')
    I(f's_mov_b64 exec, s[{sSave}:{sSave+1}]')
    I(f'v_add_u32 v{vT1}, 4, v{vT1}')
L('K2_LOADED:')
I(f'v_mov_b32 v{vT0}, 0')
I(f'v_lshlrev_b32 v{vT1}, 2, v0')
I('v_cmp_gt_u32 vcc, 128, v0')
I(f's_and_saveexec_b64 s[{sSave}:{sSave+1}], vcc')
I(f'ds_write_b32 v{vT1}, v{vT0} offset:{CNT_A}')
I(f's_mov_b64 exec, s[{sSave}:{sSave+1}]')
I(f'v_mul_u32_u24 v{vT1}, 1457, v0')
I(f'v_lshrrev_b32 v{vT1}, 16, v{vT1}')
I(f'v_mul_u32_u24 v{vT2}, 45, v{vT1}')
I(f'v_sub_u32 v{vT2}, v0, v{vT2}')
I(f'v_mul_u32_u24 v{vT1}, {BLKSZ}, v{vT1}')
I(f'v_lshl_add_u32 v{vT1}, v{vT2}, 4, v{vT1}')
I(f'v_subrev_u32 v{vT2}, 40, v{vT2}')
I(f'v_cmp_gt_u32 vcc, 4, v{vT2}')
I(f'v_mov_b32 v{vT3}, 0x7fffffff')
I('s_nop 0')
fz = TP
I(f'v_cndmask_b32 v{fz}, 0, v{vT3}, vcc')
I(f'v_cndmask_b32 v{fz+1}, 0, v{vT3}, vcc')
I(f'v_cndmask_b32 v{fz+2}, 0, v{vT3}, vcc')
I(f'v_cndmask_b32 v{fz+3}, 0, v{vT3}, vcc')
I('v_cmp_gt_u32 vcc, 495, v0')
I(f's_and_saveexec_b64 s[{sSave}:{sSave+1}], vcc')
for i in range(11):
    off = BLK_A + i * 11 * BLKSZ
    if off < 65536:
        I(f'ds_write_b128 v{vT1}, v[{fz}:{fz+3}] offset:{off}')
    else:
        if off - 11 * BLKSZ < 65536:
            I(f'v_add_u32 v{vT1}, {8*11*BLKSZ}, v{vT1}')
        I(f'ds_write_b128 v{vT1}, v[{fz}:{fz+3}] offset:{off - 8*11*BLKSZ}')
I(f's_mov_b64 exec, s[{sSave}:{sSave+1}]')
I('s_waitcnt lgkmcnt(0)')
I('s_barrier')
stamp(2, sWS, sStamp)
I('s_waitcnt vmcnt(0)')
stamp(3, sWS, sStamp)
I(f'v_mov_b32 v{vT3}, 1')
for it in range(6):
    I(f's_mov_b64 exec, s[{sMask+2*it}:{sMask+2*it+1}]')
    I(f's_cbranch_execz K2_KEY{it}')
    m = REC_M + it
    I(f'v_lshrrev_b32 v{vT0}, 14, v{m}')
    I(f'v_subrev_u32 v{vT0}, s{sN0}, v{vT0}')
    I(f'v_and_b32 v{m}, 0x3fff, v{m}')
    I(f'v_lshrrev_b32 v{REC_S+it}, 3, v{vT0}')
    I(f'v_lshlrev_b32 v{REC_S+it}, 1, v{REC_S+it}')
    I(f'v_and_b32 v{vT0}, 7, v{vT0}')
    I(f'v_mul_u32_u24 v{vT1}, 104, v{m}')
    I(f'v_lshrrev_b32 v{vT1}, 16, v{vT1}')
    I(f'v_lshl_add_u32 v{vT0}, v{vT0}, 4, v{vT1}')
    I(f'v_lshlrev_b32 v{REC_K+it}, 2, v{vT0}')
    I(f'ds_add_rtn_u32 v{REC_R+it}, v{REC_K+it}, v{vT3} offset:{CNT_A}')
    L(f'K2_KEY{it}:')
I('s_mov_b64 exec, -1')
I('s_waitcnt lgkmcnt(0)')
I('s_barrier')
stamp(4, sWS, sStamp)
cA, cB, iA, iB = TP, TP + 1, TP + 2, TP + 3
I(f'v_lshlrev_b32 v{vT0}, 2, v{vLane}')
I(f'ds_read_b32 v{cA}, v{vT0} offset:{CNT_A}')
I(f'ds_read_b32 v{cB}, v{vT0} offset:{CNT_A+256}')
I('s_waitcnt lgkmcnt(0)')
I(f'v_mov_b32 v{iA}, v{cA}')
I(f'v_mov_b32 v{iB}, v{cB}')
dpp_scan_add([iA, iB], rows_only=True)
for w in range(4):
    I(f'v_readlane_b32 s{sLen0+w}, v{iA}, {16*w+15}')
    I(f'v_readlane_b32 s{sLen0+4+w}, v{iB}, {16*w+15}')
I(f'v_sub_u32 v{iA}, v{iA}, v{cA}')
I(f'v_sub_u32 v{iB}, v{iB}, v{cB}')
I(f's_mov_b32 s{sBase0}, 0')
for w in range(7):
    I(f's_add_u32 s{sTmp}, s{sLen0+w}, 31')
    I(f's_and_b32 s{sTmp}, s{sTmp}, 0xfffffff0')
    I(f's_add_u32 s{sBase0+w+1}, s{sBase0+w}, s{sTmp}')
bA, bB = TP + 4, TP + 5
I(f'v_mov_b32 v{bA}, s{sBase0}')
I(f'v_mov_b32 v{bB}, s{sBase0+4}')
for r, (lo, hi) in enumerate([(0xffff0000, 0xffffffff), (0, 0xffffffff), (0, 0xffff0000)], start=1):
    I(f's_mov_b32 exec_lo, {hex(lo)}')
    I(f's_mov_b32 exec_hi, {hex(hi)}')
    I(f'v_mov_b32 v{bA}, s{sBase0+r}')
    I(f'v_mov_b32 v{bB}, s{sBase0+4+r}')
I('s_mov_b64 exec, -1')
I(f'v_add_u32 v{iA}, v{iA}, v{bA}')
I(f'v_add_u32 v{iB}, v{iB}, v{bB}')
I(f'ds_write_b32 v{vT0}, v{iA} offset:{OFFS_A}')
I(f'ds_write_b32 v{vT0}, v{iB} offset:{OFFS_A+256}')
I(f's_mov_b32 s{sMyLen}, s{sLen0}')
I(f's_mov_b32 s{sMyBase}, s{sBase0}')
for w in range(1, 8):
    I(f's_cmp_eq_u32 s{sWave}, {w}')
    I(f's_cselect_b32 s{sMyLen}, s{sLen0+w}, s{sMyLen}')
    I(f's_cselect_b32 s{sMyBase}, s{sBase0+w}, s{sMyBase}')
I('s_waitcnt lgkmcnt(0)')
for it in range(6):
    I(f's_mov_b64 exec, s[{sMask+2*it}:{sMask+2*it+1}]')
    I(f's_cbranch_execz K2_SC{it}')
    I(f'ds_read_b32 v{vT0}, v{REC_K+it} offset:{OFFS_A}')
    I('s_waitcnt lgkmcnt(0)')
    I(f'v_add_u32 v{vT0}, v{vT0}, v{REC_R+it}')
    I(f'v_lshrrev_b32 v{vT1}, 4, v{vT0}')
    I(f'v_mul_u32_u24 v{vT1}, {BLKSZ}, v{vT1}')
    I(f'v_and_b32 v{vT0}, 15, v{vT0}')
    I(f'v_lshl_add_u32 v{vT2}, v{vT0}, 5, v{vT1}')
    I(f'ds_write_b64 v{vT2}, v[{REC_P+4*it}:{REC_P+4*it+1}] offset:{BLK_A+T_O}')
    I(f'v_lshl_add_u32 v{vT2}, v{vT0}, 3, v{vT1}')
    I(f'ds_write_b64 v{vT2}, v[{REC_P+4*it+2}:{REC_P+4*it+3}] offset:{BLK_A+EF_O}')
    I(f'v_lshl_add_u32 v{vT2}, v{vT0}, 2, v{vT1}')
    I(f'ds_write_b32 v{vT2}, v{REC_M+it} offset:{BLK_A+IDX_O}')
    I(f'v_lshrrev_b32 v{vT2}, 3, v{vT0}')
    I(f'v_lshl_add_u32 v{vT2}, v{vT2}, 2, v{vT1}')
    I(f'v_and_b32 v{vT0}, 7, v{vT0}')
    I(f'v_lshlrev_b32 v{vT0}, 2, v{vT0}')
    I(f'v_lshlrev_b32 v{vT0}, v{vT0}, v{REC_S+it}')
    I(f'ds_or_b32 v{vT2}, v{vT0} offset:{BLK_A+SLOT_O}')
    L(f'K2_SC{it}:')
I('s_mov_b64 exec, -1')
I('s_waitcnt lgkmcnt(0)')
I('s_barrier')
stamp(5, sWS, sStamp)
I(f's_and_b32 s{sTmp}, s{sWave}, 3')
I(f's_lshl_b32 s{sTmp}, s{sTmp}, 13')
I(f'v_lshl_add_u32 v{vT0}, v{vLane}, 4, s{sTmp}')
for q in range(8):
    if q * 1024 < 4096:
        I(f'buffer_load_dwordx4 v[{WF+4*q}:{WF+4*q+3}], v{vT0}, s[{SRD_WF}:{SRD_WF+3}], 0 offen offset:{q*1024}')
    else:
        if q == 4:
            I(f'v_add_u32 v{vT1}, 4096, v{vT0}')
        I(f'buffer_load_dwordx4 v[{WF+4*q}:{WF+4*q+3}], v{vT1}, s[{SRD_WF}:{SRD_WF+3}], 0 offen offset:{q*1024-4096}')
I(f's_cmp_eq_u32 s{sMyLen}, 0')
I('s_cbranch_scc1 K2_ROUND_END')
I(f's_lshr_b32 s{sTmp}, s{sMyBase}, 4')
I(f's_mul_i32 s{sTmp}, s{sTmp}, {BLKSZ}')
I(f's_add_u32 s{sTmp}, s{sTmp}, {BLK_A}')
vTr, vTw = vT0, vT1
I(f'v_lshrrev_b32 v{vT2}, 4, v{vLane}')
I(f'v_and_b32 v{vT3}, 15, v{vLane}')
I(f'v_lshlrev_b32 v{vT3}, 5, v{vT3}')
I(f'v_mul_u32_u24 v{vTr}, {BLKSZ}, v{vT2}')
I(f'v_add3_u32 v{vTr}, v{vTr}, v{vT3}, s{sTmp}')
I(f'v_lshl_add_u32 v{vTw}, v{vT2}, 3, v{vT3}')
I(f'v_add_u32 v{vTw}, s{sTmp}, v{vTw}')
I(f'v_mov_b32 v{vBlk}, s{sTmp}')
I(f'v_lshlrev_b32 v{vL8}, 3, v{vLane}')
I(f'v_add_u32 v{vL8}, s{sTmp}, v{vL8}')
I(f's_add_u32 s{sRem}, s{sMyLen}, 15')
I(f's_lshr_b32 s{sRem}, s{sRem}, 4')
L('K2_TPASS:')
I(f'ds_read_b64 v[{TPY}:{TPY+1}], v{vTr}')
I('s_waitcnt lgkmcnt(0)')
I(f'v_mfma_f32_16x16x4_4b_bf16 v[{TPD}:{TPD+15}], v[{CGA}:{CGA+1}], v[{TPY}:{TPY+1}], 0')
I(f'v_add_u32 v{vTr}, {4*BLKSZ}, v{vTr}')
I('s_nop 7')
I('s_nop 3')
for k in range(8):
    I(f'v_pk_mul_f32 v[{TPD+2*k}:{TPD+2*k+1}], v[{TPD+2*k}:{TPD+2*k+1}], s[{sNln2}:{sNln2+1}]')
for k in range(8):
    I(f'v_cvt_pk_bf16_f32 v{TPP+k}, v{TPD+2*k}, v{TPD+2*k+1}')
for b in range(4):
    if b > 0:
        I(f's_cmp_le_u32 s{sRem}, {b}')
        I('s_cbranch_scc1 K2_TDONE')
    I(f'ds_write_b64 v{vTw}, v[{TPP+2*b}:{TPP+2*b+1}] offset:{b*BLKSZ}')
I(f'v_add_u32 v{vTw}, {4*BLKSZ}, v{vTw}')
I(f's_sub_u32 s{sRem}, s{sRem}, 4')
I(f's_cmp_gt_u32 s{sRem}, 0')
I('s_cbranch_scc1 K2_TPASS')
L('K2_TDONE:')
I('s_waitcnt lgkmcnt(0)')
stamp(6, sWS, sStamp)

def Xs(s): return XR + 4 * (s % NX)
def Ps(s): return PAIR + 2 * (s % 16)
def TPs(s): return TP + 8 * (s % 2)
def Yreg(g, par, e): return YY + 8 * (g % 2) + 4 * par + e
def Sp(p): return ES + 2 * (p % 2)
def idx_off(s):
    return (s // 16) * BLKSZ + IDX_O + (s % 16) * 4

class Op:
    def __init__(s, text, vm=None, lg=None, wait_vm=None, wait_lg=None):
        s.text, s.vm, s.lg, s.wait_vm, s.wait_lg = text, vm, lg, wait_vm, wait_lg

def pair_of_step(s):
    return ((s - 1) // 4 + 1, (s - 1) % 4)
def pair_regs(g, k):
    par, e0 = k % 2, (k // 2) * 2
    return Yreg(g, par, e0)

def rm(g, par, lo):
    y = Yreg(g, par, 0)
    w = WB + 4 * par + (2 if lo else 0)
    c = f'v[{y}:{y+3}]' if lo else '0'
    return f'v_mfma_f32_4x4x4_16b_bf16 v[{y}:{y+3}], v[{EF}:{EF+1}], v[{w}:{w+1}], {c} cbsz:4 abid:{g % 4}'

def step_ops(s):
    r = s % 16
    ops = []
    A = ops.append
    x = Xs(s + 1); tp = TPs(s + 1)
    g1, k1 = pair_of_step(s)
    g2, k2 = pair_of_step(s - 1)
    y1 = pair_regs(g1, k1); y2 = pair_regs(g2, k2)
    s1 = Sp(s); s2 = Sp(s - 1)
    A(Op(None, wait_vm=('X', s + 1), wait_lg=(('T', (s + 1) // 16) if r == 15 else None)))
    A(Op(f'v_mfma_f32_4x4x4_16b_bf16 v[{tp}:{tp+3}], v[{TT}:{TT+1}], v[{x}:{x+1}], 0 cbsz:4 abid:{(r+1)%16}'))
    A(Op(f'v_exp_f32 v{s1}, v{y1}'))
    A(Op(f'v_mfma_f32_4x4x4_16b_bf16 v[{tp+4}:{tp+7}], v[{TT}:{TT+1}], v[{x+2}:{x+3}], 0 cbsz:4 abid:{(r+1)%16}'))
    A(Op(f'v_exp_f32 v{s1+1}, v{y1+1}'))
    gn = s // 4 + 1
    if r % 4 == 0:
        if r == 12:
            A(Op(None, wait_lg=('EF', (s + 4) // 16)))
        A(Op(rm(gn, 0, False)))
    A(Op(f'v_rcp_f32 v{s2}, v{s2}'))
    if r % 4 == 0:
        A(Op(rm(gn, 1, False)))
    A(Op(f'v_rcp_f32 v{s2+1}, v{s2+1}'))
    A(Op(None, wait_lg=('I', s + 1 + NX)))
    p = Ps(s + 1 + NX)
    A(Op(f'buffer_load_dwordx4 v[{x}:{x+3}], v[{p}:{p+1}], s[{SRD_X}:{SRD_X+3}], 0 idxen offen', vm=('X', s + 1 + NX)))
    q = s + 1 + NX + LA
    A(Op(f'ds_read_b32 v{Ps(q)}, v{vBlk} offset:{idx_off(r + 1 + NX + LA)}', lg=('I', q)))
    if r == 14:
        A(Op(f'ds_read_b64 v[{TT}:{TT+1}], v{vL8} offset:{BLKSZ+T_O}', lg=('T', s // 16 + 1)))
    if r == 9:
        A(Op(f'ds_read_b64 v[{EF}:{EF+1}], v{vL8} offset:{BLKSZ+EF_O}', lg=('EF', s // 16 + 1)))
        A(Op(f'ds_read_b32 v{vSl}, v{vBlk} offset:{BLKSZ+SLOT_O}', lg=('S0', s // 16 + 1)))
    if r == 1:
        A(Op(f'ds_read_b32 v{vSl+1}, v{vBlk} offset:{SLOT_O+4}', lg=('S1', s // 16)))
    A(Op(f'v_pk_add_f32 v[{s1}:{s1+1}], v[{s1}:{s1+1}], s[{sOne}:{sOne+1}]'))
    if CFG['HILO'] and r % 4 == 0:
        A(Op(rm(gn, 0, True)))
    A(Op(f'v_pk_mul_f32 v[{y2}:{y2+1}], v[{y2}:{y2+1}], v[{s2}:{s2+1}]'))
    if CFG['HILO'] and r % 4 == 0:
        A(Op(rm(gn, 1, True)))
    g0, e0 = s // 4, s % 4
    sl = sSl0 if r < 8 else sSl1
    A(Op(f's_bfe_u32 s{sTmp}, s{sl}, {hex(((r % 8) * 4) | (4 << 16))}'))
    A(Op(f's_set_gpr_idx_on s{sTmp}, 0xc'))
    tpc = TPs(s)
    for qq in range(4):
        par, h = qq // 2, qq % 2
        rr = Yreg(g0, par, e0)
        base = rr & ~1
        sel = rr & 1
        a = ACC + 10 * qq
        d = tpc + 4 * par + 2 * h
        mods = 'op_sel_hi:[1,0,1]' if sel == 0 else 'op_sel:[0,1,0] op_sel_hi:[1,1,1]'
        A(Op(f'v_pk_fma_f32 v[{a}:{a+1}], v[{d}:{d+1}], v[{base}:{base+1}], v[{a}:{a+1}] {mods}'))
    A(Op('s_set_gpr_idx_off'))
    if r == 3:
        A(Op(None, wait_lg=('S1', s // 16)))
        A(Op(f'v_readfirstlane_b32 s{sSl1}, v{vSl+1}'))
    if r == 11:
        A(Op(None, wait_lg=('S0', s // 16 + 1)))
        A(Op(f'v_readfirstlane_b32 s{sSl0}, v{vSl}'))
    if r == 15:
        A(Op(f'v_add_u32 v{vBlk}, {BLKSZ}, v{vBlk}'))
        A(Op(f'v_add_u32 v{vL8}, {BLKSZ}, v{vL8}'))
    if r % 4 == 3:
        A(Op(f's_sub_i32 s{sRem}, s{sRem}, 4'))
        A(Op(f's_cmp_le_i32 s{sRem}, 0'))
        A(Op('s_cbranch_scc1 K2_MAIN_DONE'))
    return ops

def resolve(nit=3):
    seq = []
    for s in range(16 * nit):
        for o in step_ops(s):
            seq.append((s, o))
    res = {}
    for i, (s, o) in enumerate(seq):
        if o.text is None:
            w = {}
            for cls, tag in (('vm', o.wait_vm), ('lg', o.wait_lg)):
                if tag is None: continue
                j = None
                for jj in range(i - 1, -1, -1):
                    if getattr(seq[jj][1], cls) == tag:
                        j = jj; break
                if j is None:
                    w[cls] = None
                else:
                    w[cls] = sum(1 for jj in range(j + 1, i) if getattr(seq[jj][1], cls) is not None)
            res[i] = w
    return seq, res

seq, res = resolve(3)
n_per = len(seq) // 3
body = []
for i in range(n_per, 2 * n_per):
    s, o = seq[i]
    if o.text is not None:
        body.append(o.text)
    else:
        w = res[i]; w3 = res[i + n_per]
        assert w == w3, (s, w, w3)
        parts = []
        if 'vm' in w: parts.append(f'vmcnt({w["vm"]})')
        if 'lg' in w: parts.append(f'lgkmcnt({w["lg"]})')
        if parts:
            for k, v in w.items():
                assert v is not None and v <= (63 if k == 'vm' else 15), (s, w)
            body.append('s_waitcnt ' + ' '.join(parts))

C_('main loop prologue')
I(f's_add_u32 s{sRem}, s{sMyLen}, 3')
I(f's_and_b32 s{sRem}, s{sRem}, 0xfffffffc')
I(f'v_lshlrev_b32 v{vT0}, 4, v{vLane}')
for k in range(16):
    I(f'v_mov_b32 v{PAIR+2*k+1}, v{vT0}')
for k in range(16):
    I(f'ds_read_b32 v{Ps(k)}, v{vBlk} offset:{idx_off(k)}')
I(f'ds_read_b64 v[{TT}:{TT+1}], v{vL8} offset:{T_O}')
I(f'ds_read_b64 v[{EF}:{EF+1}], v{vL8} offset:{EF_O}')
I(f'ds_read_b32 v{vSl}, v{vBlk} offset:{SLOT_O}')
I('s_waitcnt lgkmcnt(0)')
for k in range(NX):
    I(f'buffer_load_dwordx4 v[{Xs(k)}:{Xs(k)+3}], v[{Ps(k)}:{Ps(k)+1}], s[{SRD_X}:{SRD_X+3}], 0 idxen offen')
for k in range(16, NX + 1 + LA):
    I(f'ds_read_b32 v{Ps(k)}, v{vBlk} offset:{idx_off(k)}')
I(f'v_readfirstlane_b32 s{sSl0}, v{vSl}')
I(rm(0, 0, False)); I(rm(0, 1, False))
if CFG['HILO']:
    I('s_nop 1')
    I(rm(0, 0, True)); I(rm(0, 1, True))
I('s_nop 4')
for k in (0, 1):
    y = pair_regs(0, k); t = ES + 4
    I(f'v_exp_f32 v{t}, v{y}'); I(f'v_exp_f32 v{t+1}, v{y+1}')
    I('s_nop 0')
    I(f'v_pk_add_f32 v[{t}:{t+1}], v[{t}:{t+1}], s[{sOne}:{sOne+1}]')
    I(f'v_rcp_f32 v{t}, v{t}'); I(f'v_rcp_f32 v{t+1}, v{t+1}')
    I('s_nop 0')
    I(f'v_pk_mul_f32 v[{y}:{y+1}], v[{y}:{y+1}], v[{t}:{t+1}]')
y = pair_regs(0, 2); t = Sp(-1)
assert pair_of_step(-1) == (0, 2)
I(f'v_exp_f32 v{t}, v{y}'); I(f'v_exp_f32 v{t+1}, v{y+1}')
I('s_nop 0')
I(f'v_pk_add_f32 v[{t}:{t+1}], v[{t}:{t+1}], s[{sOne}:{sOne+1}]')
I(f's_waitcnt vmcnt({NX-1}) lgkmcnt(0)')
x = Xs(0); tp = TPs(0)
I(f'v_mfma_f32_4x4x4_16b_bf16 v[{tp}:{tp+3}], v[{TT}:{TT+1}], v[{x}:{x+1}], 0 cbsz:4 abid:0')
I(f'v_mfma_f32_4x4x4_16b_bf16 v[{tp+4}:{tp+7}], v[{TT}:{TT+1}], v[{x+2}:{x+3}], 0 cbsz:4 abid:0')
p = Ps(NX)
I(f'buffer_load_dwordx4 v[{x}:{x+3}], v[{p}:{p+1}], s[{SRD_X}:{SRD_X+3}], 0 idxen offen')
stamp(7, sWS, sStamp)
L('.p2align 6')
L('K2_MAIN:')
for t in body:
    I(t)
I('s_branch K2_MAIN')
L('K2_MAIN_DONE:')
I('s_waitcnt vmcnt(0) lgkmcnt(0)')
L('K2_ROUND_END:')
stamp(8, sWS, sStamp)
I(f's_lshl_b32 s{sTmp}, s{sK4}, 2')
I(f's_add_u32 s{sRbase}, s{sRbase}, s{sTmp}')
I(f's_cmp_ge_u32 s{sRbase}, s{sMaxC}')
I('s_cbranch_scc1 K2_EPI')
I('s_barrier')
I('s_branch K2_ROUND')

L('K2_EPI:')
I(f's_mul_i32 s{sTmp}, s{sWave}, {4*AGG_STR}')
I(f's_add_u32 s{sTmp}, s{sTmp}, {AGG_A}')
I(f'v_lshl_add_u32 v{vT0}, v{vLane}, 2, s{sTmp}')
pk = XR
for sl in range(5):
    for m in range(4):
        ae = ACC + 10 * (m // 2) + 2 * sl + (m % 2)
        ao = ACC + 10 * (2 + m // 2) + 2 * sl + (m % 2)
        I(f'v_cvt_pk_bf16_f32 v{pk + sl*4 + m}, v{ae}, v{ao}')
for sl in range(5):
    for m in range(4):
        I(f'ds_write_b32 v{vT0}, v{pk + sl*4 + m} offset:{(sl*32 + m) * AGG_STR}')
I('s_waitcnt vmcnt(0) lgkmcnt(0)')
I('s_barrier')
stamp(9, sWS, sStamp)
I(f's_lshr_b32 s{sA}, s{sWave}, 2')
I(f's_mul_i32 s{sTmp}, s{sA}, {5*16*AGG_STR}')
I(f's_add_u32 s{sTmp}, s{sTmp}, {AGG_A}')
I(f'v_and_b32 v{vT1}, 15, v{vLane}')
I(f'v_mul_u32_u24 v{vT0}, {AGG_STR}, v{vT1}')
I(f'v_lshrrev_b32 v{vT2}, 4, v{vLane}')
I(f'v_lshl_add_u32 v{vT0}, v{vT2}, 4, v{vT0}')
I(f'v_add_u32 v{vT0}, s{sTmp}, v{vT0}')
I(f's_mul_i32 s{sTmp}, s{sA}, 20')
I(f's_add_u32 s{sTmp}, s{sTmp}, s{sN0}')
I(f's_lshl_b32 s{sTmp}, s{sTmp}, 10')
I(f's_and_b32 s{sTmp2}, s{sWave}, 3')
I(f's_lshl_b32 s{sTmp2}, s{sTmp2}, 8')
I(f's_add_u32 s{sTmp}, s{sTmp}, s{sTmp2}')
I(f'v_lshlrev_b32 v{vT2}, 10, v{vT2}')
I(f'v_lshl_add_u32 v{vT2}, v{vT1}, 4, v{vT2}')
I(f'v_add_u32 v{vT2}, s{sTmp}, v{vT2}')
AF = XR
DD = PAIR
OP = PAIR + 16
def a_reads(i):
    b = AF + 16 * (i % 2)
    for ks in range(4):
        I(f'ds_read_b128 v[{b+4*ks}:{b+4*ks+3}], v{vT0} offset:{i*16*AGG_STR + ks*64}')
a_reads(0)
for i in range(5):
    if i + 1 < 5:
        a_reads(i + 1)
        I('s_waitcnt lgkmcnt(4)')
    else:
        I('s_waitcnt lgkmcnt(0)')
    b = AF + 16 * (i % 2)
    d = DD + 8 * (i % 2)
    for ks in range(4):
        for t in range(2):
            w = WF + 4 * (t * 4 + ks)
            c = '0' if ks == 0 else f'v[{d+4*t}:{d+4*t+3}]'
            I(f'v_mfma_f32_16x16x32_bf16 v[{d+4*t}:{d+4*t+3}], v[{b+4*ks}:{b+4*ks+3}], v[{w}:{w+3}], {c}')
    I('s_nop 7')
    o = OP + 4 * (i % 2)
    I(f'v_cvt_pk_bf16_f32 v{o}, v{d}, v{d+1}')
    I(f'v_cvt_pk_bf16_f32 v{o+1}, v{d+2}, v{d+3}')
    I(f'v_cvt_pk_bf16_f32 v{o+2}, v{d+4}, v{d+5}')
    I(f'v_cvt_pk_bf16_f32 v{o+3}, v{d+6}, v{d+7}')
    if i > 0:
        I(f'v_add_u32 v{vT2}, 4096, v{vT2}')
    I(f'buffer_store_dwordx4 v[{o}:{o+3}], v{vT2}, s[{SRD_OUT}:{SRD_OUT+3}], 0 offen')
    I('s_nop 1')
stamp(10, sWS, sStamp)
L('K2_END:')
I('s_endpgm')

L('.section .rodata,"a"')
for name, nv, ns in (('tfn_sort_kernel', 64, 40), ('tfn_main_kernel', 256, 96)):
    L('.p2align 6')
    L(f'.amdhsa_kernel {name}')
    L(f'  .amdhsa_next_free_vgpr {nv}')
    L(f'  .amdhsa_next_free_sgpr {ns}')
    L(f'  .amdhsa_accum_offset {nv}')
    L('  .amdhsa_group_segment_fixed_size 0')
    L('  .amdhsa_kernarg_size 88')
    L('  .amdhsa_user_sgpr_count 2')
    L('  .amdhsa_user_sgpr_kernarg_segment_ptr 1')
    L('  .amdhsa_system_sgpr_workgroup_id_x 1')
    L('  .amdhsa_float_denorm_mode_32 3')
    L('.end_amdhsa_kernel')

out[hdr_pos] = f'; @launch kernel=tfn_sort_kernel grid=({G},1,1) block=(640,1,1) lds={K1_LDS}'
out[hdr_pos + 1] = f'; @launch kernel=tfn_main_kernel grid=({NBIN},1,1) block=(512,1,1) lds={K2_LDS}'
open(sys.argv[1], 'w').write('\n'.join(out) + '\n')
print('VGPRs used', NV, 'K2 LDS', K2_LDS, 'MMAX', MMAX, 'lines', len(out))
```

```python
import sys

CFG = dict(NX=16, HILO=True, STAMP=False, TOUCH=False, NOLOAD=False, XRANGE=0, DROP='', FIXLEN=0)
for a in sys.argv[2:]:
    k, v = a.split('=')
    CFG[k] = eval(v)

N, E, C = 10000, 320000, 128
G = 125
CH = 2560
NBIN = 256
TAB_OFF = 0
META_OFF = 0x40000
PAY_OFF = 0x200000
WFRAG_OFF = 0x800000
STAMP_OFF = 0x900000

out = []
def L(s=''):
    out.append(s)
def C_(s):
    out.append('    ; ' + s)
def I(s):
    out.append('    ' + s)

def srd(base, lo, hi, nrec, stride=0):
    I(f's_mov_b32 s{base}, s{lo}')
    I(f's_and_b32 s{base+1}, s{hi}, 0xffff')
    if stride:
        I(f's_or_b32 s{base+1}, s{base+1}, {hex(stride << 16)}')
    if isinstance(nrec, int):
        I(f's_mov_b32 s{base+2}, {hex(nrec)}')
    else:
        I(f's_mov_b32 s{base+2}, {nrec}')
    I(f's_mov_b32 s{base+3}, 0x20000')

def stamp(k, ws_lo, tmp, vb=250):
    if not CFG['STAMP']:
        return
    I(f's_memrealtime s[{tmp}:{tmp+1}]')
    I(f's_memtime s[{tmp+2}:{tmp+3}]')
    I('s_waitcnt lgkmcnt(0)')
    for q in range(4):
        I(f'v_mov_b32 v{vb+q}, s{tmp+q}')
    I(f's_mov_b64 s[{tmp}:{tmp+1}], exec')
    I('s_mov_b64 exec, 1')
    I(f'global_store_dwordx4 v{vb+4}, v[{vb}:{vb+3}], s[{ws_lo}:{ws_lo+1}] offset:{k*16}')
    I(f's_mov_b64 exec, s[{tmp}:{tmp+1}]')

def dpp_scan_add(regs, op='v_add_u32', rows_only=False):
    steps = ['row_shr:1', 'row_shr:2', 'row_shr:4', 'row_shr:8']
    for st in steps:
        I('s_nop 1')
        for r in regs:
            I(f'{op}_dpp v{r}, v{r}, v{r} {st} row_mask:0xf bank_mask:0xf')
    if not rows_only:
        I('s_nop 1')
        for r in regs:
            I(f'{op}_dpp v{r}, v{r}, v{r} row_bcast:15 row_mask:0xa bank_mask:0xf')
        I('s_nop 1')
        for r in regs:
            I(f'{op}_dpp v{r}, v{r}, v{r} row_bcast:31 row_mask:0xc bank_mask:0xf')
    I('s_nop 1')

K2_LDS = None
hdr_pos = len(out)
L('')
L('')
L('.amdgcn_target "amdgcn-amd-amdhsa--gfx950"')
L('.text')

K1_HIST, K1_OFFS, K1_PAY, K1_META = 0, 1024, 2048, 2048 + 40960
K1_LDS = K1_META + 10240
L('.globl tfn_sort_kernel')
L('.p2align 8')
L('.type tfn_sort_kernel,@function')
L('tfn_sort_kernel:')
I(f's_cmp_ge_u32 s2, {G}')
I('s_cbranch_scc1 K1_END')
I('s_load_dwordx4 s[4:7], s[0:1], 8')
I('s_load_dwordx4 s[8:11], s[0:1], 24')
I('s_load_dwordx2 s[12:13], s[0:1], 80')
I('s_load_dwordx2 s[14:15], s[0:1], 56')
I('s_mul_i32 s16, s2, 10240')
I('s_lshl_b32 s17, s16, 1')
I('v_lshlrev_b32 v1, 4, v0')
I('v_add_u32 v2, s16, v1')
I('v_lshlrev_b32 v3, 5, v0')
I('v_add_u32 v3, s17, v3')
I('v_mov_b32 v4, 0')
I('v_lshlrev_b32 v5, 2, v0')
if CFG['STAMP']:
    I('v_lshrrev_b32 v68, 6, v0')
    I('s_mul_i32 s32, s2, 10')
    I('v_add_u32 v68, s32, v68')
    I('v_lshlrev_b32 v68, 8, v68')
    I('v_add_u32 v68, 0xA00000, v68')
I('s_waitcnt lgkmcnt(0)')
stamp(0, 12, 36, 64)
I('global_load_dwordx4 v[8:11], v2, s[6:7]')
I('global_load_dwordx4 v[12:15], v2, s[4:5]')
I('global_load_dwordx4 v[16:19], v3, s[8:9]')
I('global_load_dwordx4 v[20:23], v3, s[8:9] offset:16')
I('global_load_dwordx4 v[24:27], v3, s[10:11]')
I('global_load_dwordx4 v[28:31], v3, s[10:11] offset:16')
I('v_cmp_gt_u32 vcc, 256, v0')
I('s_and_saveexec_b64 s[18:19], vcc')
I(f'ds_write_b32 v5, v4 offset:{K1_HIST}')
I('s_mov_b64 exec, s[18:19]')
I(f's_add_u32 s20, s12, {hex(TAB_OFF)}'); I('s_addc_u32 s21, s13, 0')
I(f's_add_u32 s22, s12, {hex(META_OFF)}'); I('s_addc_u32 s23, s13, 0')
I(f's_add_u32 s24, s12, {hex(PAY_OFF)}'); I('s_addc_u32 s25, s13, 0')
I(f's_add_u32 s26, s12, {hex(WFRAG_OFF)}'); I('s_addc_u32 s27, s13, 0')
I('s_cmp_ge_u32 s2, 32')
I('s_cbranch_scc1 K1_NOWF')
I('v_cmp_gt_u32 vcc, 64, v0')
I('s_and_saveexec_b64 s[18:19], vcc')
I('s_cbranch_execz K1_WFDONE')
C_('piece (cp,t,ks)=wg, lane l: w_mix[32ks+8(l/16)+jj][32cp+2(l%16)+t]')
I('s_lshr_b32 s28, s2, 3')
I('s_lshr_b32 s29, s2, 2')
I('s_and_b32 s29, s29, 1')
I('s_and_b32 s30, s2, 3')
I('s_lshl_b32 s28, s28, 6')
I('s_lshl_b32 s29, s29, 1')
I('s_add_u32 s28, s28, s29')
I('s_lshl_b32 s30, s30, 13')
I('s_add_u32 s28, s28, s30')
I('v_lshrrev_b32 v32, 4, v0')
I('v_lshlrev_b32 v32, 11, v32')
I('v_and_b32 v33, 15, v0')
I('v_lshlrev_b32 v33, 2, v33')
I('v_add3_u32 v32, v32, v33, s28')
for jj in range(8):
    I(f'global_load_ushort v{34+jj}, v32, s[14:15] offset:{jj*256}')
I('s_lshl_b32 s28, s2, 10')
I('v_lshl_add_u32 v33, v0, 4, s28')
I('s_waitcnt vmcnt(0)')
for q in range(4):
    I(f'v_lshl_or_b32 v{44+q}, v{35+2*q}, 16, v{34+2*q}')
I('global_store_dwordx4 v33, v[44:47], s[26:27]')
L('K1_WFDONE:')
I('s_mov_b64 exec, s[18:19]')
L('K1_NOWF:')
I('s_waitcnt lgkmcnt(0)')
I('s_barrier')
stamp(1, 12, 36, 64)
I('s_waitcnt vmcnt(0)')
stamp(2, 12, 36, 64)
I('s_movk_i32 s28, 1677')
I('v_mov_b32 v6, 1')
for k in range(4):
    I(f'v_mul_u32_u24 v{32+k}, s28, v{8+k}')
    I(f'v_lshrrev_b32 v{32+k}, 16, v{32+k}')
    I(f'v_lshlrev_b32 v{32+k}, 2, v{32+k}')
for k in range(4):
    I(f'ds_add_rtn_u32 v{36+k}, v{32+k}, v6 offset:{K1_HIST}')
for k in range(4):
    I(f'v_lshl_or_b32 v{40+k}, v{8+k}, 14, v{12+k}')
I('s_waitcnt lgkmcnt(0)')
I('s_barrier')
stamp(3, 12, 36, 64)
I('v_and_b32 v7, 63, v0')
I('v_lshlrev_b32 v44, 4, v7')
I(f'ds_read_b128 v[48:51], v44 offset:{K1_HIST}')
I('s_waitcnt lgkmcnt(0)')
I('v_add_u32 v52, v48, v49')
I('v_add_u32 v53, v52, v50')
I('v_add_u32 v54, v53, v51')
I('v_mov_b32 v55, v54')
dpp_scan_add([55])
I('v_sub_u32 v56, v55, v54')
I('v_add_u32 v57, v56, v48')
I('v_add_u32 v58, v56, v52')
I('v_add_u32 v59, v56, v53')
I(f'ds_write_b128 v44, v[56:59] offset:{K1_OFFS}')
I('v_cmp_gt_u32 vcc, 64, v0')
I('s_and_saveexec_b64 s[18:19], vcc')
I('s_cbranch_execz K1_NOTAB')
for k in range(4):
    I(f'v_lshl_or_b32 v{60+k}, v{56+k}, 16, v{48+k}')
I('s_lshl_b32 s28, s2, 10')
I('v_add_u32 v45, s28, v44')
I('global_store_dwordx4 v45, v[60:63], s[20:21]')
L('K1_NOTAB:')
I('s_mov_b64 exec, s[18:19]')
I('s_waitcnt lgkmcnt(0)')
for k in range(4):
    I(f'ds_read_b32 v{48+k}, v{32+k} offset:{K1_OFFS}')
I('s_waitcnt lgkmcnt(0)')
for k in range(4):
    I(f'v_add_u32 v{48+k}, v{48+k}, v{36+k}')
    I(f'v_lshlrev_b32 v{52+k}, 4, v{48+k}')
    I(f'v_lshlrev_b32 v{48+k}, 2, v{48+k}')
for k in range(4):
    I(f'ds_write_b64 v{52+k}, v[{16+2*k}:{17+2*k}] offset:{K1_PAY}')
    I(f'ds_write_b64 v{52+k}, v[{24+2*k}:{25+2*k}] offset:{K1_PAY+8}')
    I(f'ds_write_b32 v{48+k}, v{40+k} offset:{K1_META}')
I('s_waitcnt lgkmcnt(0)')
I('s_barrier')
stamp(4, 12, 36, 64)
for i in range(4):
    I(f'ds_read_b128 v[{8+4*i}:{11+4*i}], v1 offset:{K1_PAY + i*10240}')
I(f'ds_read_b128 v[24:27], v1 offset:{K1_META}')
I('s_mul_i32 s28, s2, 40960')
I('v_add_u32 v2, s28, v1')
I('v_add_u32 v3, s16, v1')
for i in range(4):
    I(f's_waitcnt lgkmcnt({4-i})')
    if i > 0:
        I('v_add_u32 v2, 10240, v2')
    I(f'global_store_dwordx4 v2, v[{8+4*i}:{11+4*i}], s[24:25]')
I('s_waitcnt lgkmcnt(0)')
I('global_store_dwordx4 v3, v[24:27], s[22:23]')
stamp(5, 12, 36, 64)
if CFG['STAMP']:
    I('s_waitcnt vmcnt(0)')
stamp(6, 12, 36, 64)
L('K1_END:')
I('s_endpgm')

NX = CFG['NX']
LA = 2
BLKSZ = 720
T_O, EF_O, IDX_O, SLOT_O = 0, 512, 640, 704
NBLK = 121
CNT_A, OFFS_A, BLK_A = 0, 512, 1024
AGG_A = BLK_A + NBLK * BLKSZ
AGG_STR = 272
K2_LDS = AGG_A + 160 * AGG_STR
MMAX = (NBLK - 2) * 16 - 248

class VA:
    def __init__(self): self.n = 0
    def __call__(self, k=1, align=1):
        self.n = (self.n + align - 1) // align * align
        r = self.n; self.n += k; return r
va = VA()
vTid = va()
vLane = va()
vL8 = va()
vBlk = va()
vT0 = va(); vT1 = va(); vT2 = va(); vT3 = va()
ACC = va(40, 2)
XR = va(4 * NX, 4)
PAIR = va(32, 2)
TP = va(16, 4)
YY = va(16, 4)
ES = va(8, 2)
TT = va(2, 2)
EF = va(2, 2)
WB = va(8, 2)
WF = va(32, 4)
vSl = va(2, 2)
CGA = va(2, 2)
vMisc = va(8, 2)
NV = va.n
assert NV <= 250, NV
REC_M = XR
REC_P = XR + 8
REC_R = XR + 32
REC_K = XR + 40
REC_S = XR + 48
TPD = PAIR
TPP = PAIR + 16
TPY = PAIR + 24

sWave = 3
SRD_X, SRD_PAY, SRD_META, SRD_TAB, SRD_OUT, SRD_WF = 4, 8, 12, 16, 20, 24
sWS = 28
sN0 = 30; sNB = 31
sM = 32; sMaxC = 33; sK4 = 34; sRbase = 35
sMask = 36
sLen0 = 48
sBase0 = 56
sMyLen = 64; sMyBase = 65; sRem = 66; sSl0 = 67; sSl1 = 68; sTmp = 69; sTmp2 = 70
sOne = 72
sNln2 = 74
sA = 76; sB = 78; sStamp = 92
sSave = 82
sP0 = 84

L('.globl tfn_main_kernel')
L('.p2align 8')
L('.type tfn_main_kernel,@function')
L('tfn_main_kernel:')
I(f's_cmp_ge_u32 s2, {NBIN}')
I('s_cbranch_scc1 K2_END')
I(f's_load_dwordx2 s[{sP0}:{sP0+1}], s[0:1], 0')
I(f's_load_dwordx4 s[{sP0+4}:{sP0+7}], s[0:1], 40')
I(f's_load_dwordx2 s[{sP0+2}:{sP0+3}], s[0:1], 64')
I(f's_load_dwordx2 s[{sWS}:{sWS+1}], s[0:1], 80')
I(f'v_lshrrev_b32 v{vT0}, 6, v0')
I(f'v_and_b32 v{vLane}, 63, v0')
I(f'v_readfirstlane_b32 s{sWave}, v{vT0}')
I(f's_lshl_b32 s{sTmp}, s2, 16')
I(f's_add_u32 s{sTmp}, s{sTmp}, 1676')
I(f's_mov_b32 s{sTmp2}, 2561102')
I(f's_mul_hi_u32 s{sN0}, s{sTmp}, s{sTmp2}')
I(f's_add_u32 s{sTmp}, s{sTmp}, 0x10000')
I(f's_mul_hi_u32 s{sNB}, s{sTmp}, s{sTmp2}')
I(f's_min_u32 s{sNB}, s{sNB}, {N}')
if CFG['STAMP']:
    I(f's_lshl_b32 s{sTmp}, s2, 3')
    I(f's_add_u32 s{sTmp}, s{sTmp}, s{sWave}')
    I(f's_lshl_b32 s{sTmp}, s{sTmp}, 8')
    I(f's_add_u32 s{sTmp}, s{sTmp}, {hex(STAMP_OFF)}')
    I(f'v_mov_b32 v254, s{sTmp}')
I('s_waitcnt lgkmcnt(0)')
stamp(0, sWS, sStamp)
srd(SRD_X, sP0, sP0 + 1, 0 if CFG['NOLOAD'] else N, stride=1024)
def ws_srd(base, off, size):
    I(f's_add_u32 s{sA}, s{sWS}, {hex(off)}')
    I(f's_addc_u32 s{sA+1}, s{sWS+1}, 0')
    srd(base, sA, sA + 1, size)
ws_srd(SRD_TAB, TAB_OFF, G * 1024)
ws_srd(SRD_META, META_OFF, G * CH * 4)
ws_srd(SRD_PAY, PAY_OFF, G * CH * 16)
ws_srd(SRD_WF, WFRAG_OFF, 32768)
I(f's_lshl_b32 s{sTmp}, s{sNB}, 10')
srd(SRD_OUT, sP0 + 2, sP0 + 3, f's{sTmp}')
I(f's_lshl_b32 s{sTmp}, s2, 2')
I(f'v_lshl_add_u32 v{vT0}, v{vLane}, 10, s{sTmp}')
I(f'v_lshrrev_b32 v{vT1}, 2, v0')
I(f'v_lshl_add_u32 v{vT1}, v{vT1}, 10, s{sTmp}')
I(f'v_add_u32 v{vT2}, 0x10000, v{vT0}')
tabA, tabB, tabO = vMisc, vMisc + 1, vMisc + 2
I(f'buffer_load_dword v{tabA}, v{vT0}, s[{SRD_TAB}:{SRD_TAB+3}], 0 offen')
I(f'buffer_load_dword v{tabB}, v{vT2}, s[{SRD_TAB}:{SRD_TAB+3}], 0 offen')
I(f'buffer_load_dword v{tabO}, v{vT1}, s[{SRD_TAB}:{SRD_TAB+3}], 0 offen')
wr = YY
I(f'v_lshlrev_b32 v{vT0}, 2, v{vLane}')
for kk in range(4):
    I(f'global_load_dword v{wr+kk}, v{vT0}, s[{sP0+4}:{sP0+5}] offset:{kk*256}')
cgr = YY + 4
I(f'v_and_b32 v{vT1}, 3, v{vLane}')
I(f'v_lshlrev_b32 v{vT1}, 5, v{vT1}')
I(f'v_bfe_u32 v{vT2}, v{vLane}, 2, 2')
I(f'v_lshl_add_u32 v{vT1}, v{vT2}, 1, v{vT1}')
for f in range(4):
    I(f'global_load_ushort v{cgr+f}, v{vT1}, s[{sP0+6}:{sP0+7}] offset:{f*8}')
for k in range(40):
    I(f'v_mov_b32 v{ACC+k}, 0')
I(f's_mov_b32 s{sOne}, 1.0'); I(f's_mov_b32 s{sOne+1}, 1.0')
I(f's_mov_b32 s{sNln2}, 0xbf317218'); I(f's_mov_b32 s{sNln2+1}, 0xbf317218')
I(f's_mov_b32 s{sRbase}, 0')
I('s_waitcnt vmcnt(8)')
I(f'v_and_b32 v{vT0}, 0xffff, v{tabA}')
I(f'v_and_b32 v{vT1}, 0xffff, v{tabB}')
I(f'v_add_u32 v{vT2}, v{vT0}, v{vT1}')
I(f'v_max_u32 v{vT3}, v{vT0}, v{vT1}')
for st, rm in [('row_shr:1', 'f'), ('row_shr:2', 'f'), ('row_shr:4', 'f'), ('row_shr:8', 'f'), ('row_bcast:15', 'a'), ('row_bcast:31', 'c')]:
    I('s_nop 0')
    I(f'v_add_u32_dpp v{vT2}, v{vT2}, v{vT2} {st} row_mask:0x{rm} bank_mask:0xf')
    I(f'v_max_u32_dpp v{vT3}, v{vT3}, v{vT3} {st} row_mask:0x{rm} bank_mask:0xf')
I('s_nop 1')
I(f'v_readlane_b32 s{sM}, v{vT2}, 63')
I(f'v_readlane_b32 s{sMaxC}, v{vT3}, 63')
vCnt, vE0 = vMisc + 3, vMisc + 4
I(f'v_and_b32 v{vCnt}, 0xffff, v{tabO}')
I(f'v_lshrrev_b32 v{vE0}, 16, v{tabO}')
I(f'v_lshrrev_b32 v{vT0}, 2, v0')
I(f'v_mul_u32_u24 v{vT0}, {CH}, v{vT0}')
I(f'v_and_b32 v{vT1}, 3, v0')
I(f'v_add3_u32 v{vE0}, v{vE0}, v{vT0}, v{vT1}')
vSub = vMisc + 5
I(f'v_mov_b32 v{vSub}, v{vT1}')
I(f's_mov_b32 s{sK4}, 6')
I(f's_cmp_gt_u32 s{sM}, {MMAX}')
I(f's_cselect_b32 s{sK4}, 3, s{sK4}')
I(f's_cmp_gt_u32 s{sMaxC}, 24')
I(f's_cselect_b32 s{sK4}, 3, s{sK4}')
I('s_waitcnt vmcnt(0)')
NLOG2E = 0xbfb8aa3b
I(f's_mov_b32 s{sTmp}, {hex(NLOG2E)}')
fe, fo = TP, TP + 4
for kk in range(4):
    I(f'v_lshlrev_b32 v{fe+kk}, 16, v{wr+kk}')
    I(f'v_and_b32 v{fo+kk}, 0xffff0000, v{wr+kk}')
for kk in range(4):
    I(f'v_mul_f32 v{fe+kk}, s{sTmp}, v{fe+kk}')
    I(f'v_mul_f32 v{fo+kk}, s{sTmp}, v{fo+kk}')
for par, f in ((0, fe), (1, fo)):
    hi, lo = WB + 4 * par, WB + 4 * par + 2
    I(f'v_cvt_pk_bf16_f32 v{hi}, v{f}, v{f+1}')
    I(f'v_cvt_pk_bf16_f32 v{hi+1}, v{f+2}, v{f+3}')
    t = TP + 8
    I(f'v_lshlrev_b32 v{t}, 16, v{hi}')
    I(f'v_and_b32 v{t+1}, 0xffff0000, v{hi}')
    I(f'v_lshlrev_b32 v{t+2}, 16, v{hi+1}')
    I(f'v_and_b32 v{t+3}, 0xffff0000, v{hi+1}')
    for kk in range(4):
        I(f'v_sub_f32 v{t+kk}, v{f+kk}, v{t+kk}')
    I(f'v_cvt_pk_bf16_f32 v{lo}, v{t}, v{t+1}')
    I(f'v_cvt_pk_bf16_f32 v{lo+1}, v{t+2}, v{t+3}')
I(f'v_lshl_or_b32 v{CGA}, v{cgr+1}, 16, v{cgr}')
I(f'v_lshl_or_b32 v{CGA+1}, v{cgr+3}, 16, v{cgr+2}')
stamp(1, sWS, sStamp)

L('K2_ROUND:')
vMo, vPo = vMisc + 6, vMisc + 7
I(f'v_add_u32 v{vT0}, s{sRbase}, v{vE0}')
I(f'v_lshlrev_b32 v{vMo}, 2, v{vT0}')
I(f'v_lshlrev_b32 v{vPo}, 4, v{vT0}')
I(f'v_add_u32 v{vT1}, s{sRbase}, v{vSub}')
for it in range(6):
    if it == 3:
        I(f's_mov_b64 s[{sMask+6}:{sMask+7}], 0')
        I(f's_mov_b64 s[{sMask+8}:{sMask+9}], 0')
        I(f's_mov_b64 s[{sMask+10}:{sMask+11}], 0')
        I(f's_cmp_eq_u32 s{sK4}, 3')
        I('s_cbranch_scc1 K2_LOADED')
    I(f'v_cmp_lt_u32 vcc, v{vT1}, v{vCnt}')
    I(f's_and_saveexec_b64 s[{sSave}:{sSave+1}], vcc')
    I(f's_mov_b64 s[{sMask+2*it}:{sMask+2*it+1}], exec')
    I(f's_cbranch_execz K2_LD{it}')
    I(f'buffer_load_dword v{REC_M+it}, v{vMo}, s[{SRD_META}:{SRD_META+3}], 0 offen offset:{16*it}')
    I(f'buffer_load_dwordx4 v[{REC_P+4*it}:{REC_P+4*it+3}], v{vPo}, s[{SRD_PAY}:{SRD_PAY+3}], 0 offen offset:{64*it}')
    L(f'K2_LD{it}:')
    I(f's_mov_b64 exec, s[{sSave}:{sSave+1}]')
    I(f'v_add_u32 v{vT1}, 4, v{vT1}')
L('K2_LOADED:')
I(f'v_mov_b32 v{vT0}, 0')
I(f'v_lshlrev_b32 v{vT1}, 2, v0')
I('v_cmp_gt_u32 vcc, 128, v0')
I(f's_and_saveexec_b64 s[{sSave}:{sSave+1}], vcc')
I(f'ds_write_b32 v{vT1}, v{vT0} offset:{CNT_A}')
I(f's_mov_b64 exec, s[{sSave}:{sSave+1}]')
I(f'v_mul_u32_u24 v{vT1}, 1457, v0')
I(f'v_lshrrev_b32 v{vT1}, 16, v{vT1}')
I(f'v_mul_u32_u24 v{vT2}, 45, v{vT1}')
I(f'v_sub_u32 v{vT2}, v0, v{vT2}')
I(f'v_mul_u32_u24 v{vT1}, {BLKSZ}, v{vT1}')
I(f'v_lshl_add_u32 v{vT1}, v{vT2}, 4, v{vT1}')
I(f'v_subrev_u32 v{vT2}, 40, v{vT2}')
I(f'v_cmp_gt_u32 vcc, 4, v{vT2}')
I(f'v_mov_b32 v{vT3}, 0x7fffffff')
I('s_nop 0')
fz = TP
I(f'v_cndmask_b32 v{fz}, 0, v{vT3}, vcc')
I(f'v_cndmask_b32 v{fz+1}, 0, v{vT3}, vcc')
I(f'v_cndmask_b32 v{fz+2}, 0, v{vT3}, vcc')
I(f'v_cndmask_b32 v{fz+3}, 0, v{vT3}, vcc')
I('v_cmp_gt_u32 vcc, 495, v0')
I(f's_and_saveexec_b64 s[{sSave}:{sSave+1}], vcc')
for i in range(11):
    off = BLK_A + i * 11 * BLKSZ
    if off < 65536:
        I(f'ds_write_b128 v{vT1}, v[{fz}:{fz+3}] offset:{off}')
    else:
        if off - 11 * BLKSZ < 65536:
            I(f'v_add_u32 v{vT1}, {8*11*BLKSZ}, v{vT1}')
        I(f'ds_write_b128 v{vT1}, v[{fz}:{fz+3}] offset:{off - 8*11*BLKSZ}')
I(f's_mov_b64 exec, s[{sSave}:{sSave+1}]')
I('s_waitcnt lgkmcnt(0)')
I('s_barrier')
stamp(2, sWS, sStamp)
I('s_waitcnt vmcnt(0)')
stamp(3, sWS, sStamp)
I(f'v_mov_b32 v{vT3}, 1')
for it in range(6):
    I(f's_mov_b64 exec, s[{sMask+2*it}:{sMask+2*it+1}]')
    I(f's_cbranch_execz K2_KEY{it}')
    m = REC_M + it
    I(f'v_lshrrev_b32 v{vT0}, 14, v{m}')
    I(f'v_subrev_u32 v{vT0}, s{sN0}, v{vT0}')
    xm = hex(CFG['XRANGE'] - 1 if CFG['XRANGE'] else 0x3fff)
    I(f'v_and_b32 v{m}, {xm}, v{m}')
    I(f'v_lshrrev_b32 v{REC_S+it}, 3, v{vT0}')
    I(f'v_lshlrev_b32 v{REC_S+it}, 1, v{REC_S+it}')
    I(f'v_and_b32 v{vT0}, 7, v{vT0}')
    I(f'v_mul_u32_u24 v{vT1}, 104, v{m}')
    I(f'v_lshrrev_b32 v{vT1}, 16, v{vT1}')
    I(f'v_lshl_add_u32 v{vT0}, v{vT0}, 4, v{vT1}')
    I(f'v_lshlrev_b32 v{REC_K+it}, 2, v{vT0}')
    I(f'ds_add_rtn_u32 v{REC_R+it}, v{REC_K+it}, v{vT3} offset:{CNT_A}')
    L(f'K2_KEY{it}:')
I('s_mov_b64 exec, -1')
I('s_waitcnt lgkmcnt(0)')
I('s_barrier')
stamp(4, sWS, sStamp)
cA, cB, iA, iB = TP, TP + 1, TP + 2, TP + 3
I(f'v_lshlrev_b32 v{vT0}, 2, v{vLane}')
I(f'ds_read_b32 v{cA}, v{vT0} offset:{CNT_A}')
I(f'ds_read_b32 v{cB}, v{vT0} offset:{CNT_A+256}')
I('s_waitcnt lgkmcnt(0)')
I(f'v_mov_b32 v{iA}, v{cA}')
I(f'v_mov_b32 v{iB}, v{cB}')
dpp_scan_add([iA, iB], rows_only=True)
for w in range(4):
    I(f'v_readlane_b32 s{sLen0+w}, v{iA}, {16*w+15}')
    I(f'v_readlane_b32 s{sLen0+4+w}, v{iB}, {16*w+15}')
I(f'v_sub_u32 v{iA}, v{iA}, v{cA}')
I(f'v_sub_u32 v{iB}, v{iB}, v{cB}')
I(f's_mov_b32 s{sBase0}, 0')
for w in range(7):
    I(f's_add_u32 s{sTmp}, s{sLen0+w}, 31')
    I(f's_and_b32 s{sTmp}, s{sTmp}, 0xfffffff0')
    I(f's_add_u32 s{sBase0+w+1}, s{sBase0+w}, s{sTmp}')
bA, bB = TP + 4, TP + 5
I(f'v_mov_b32 v{bA}, s{sBase0}')
I(f'v_mov_b32 v{bB}, s{sBase0+4}')
for r, (lo, hi) in enumerate([(0xffff0000, 0xffffffff), (0, 0xffffffff), (0, 0xffff0000)], start=1):
    I(f's_mov_b32 exec_lo, {hex(lo)}')
    I(f's_mov_b32 exec_hi, {hex(hi)}')
    I(f'v_mov_b32 v{bA}, s{sBase0+r}')
    I(f'v_mov_b32 v{bB}, s{sBase0+4+r}')
I('s_mov_b64 exec, -1')
I(f'v_add_u32 v{iA}, v{iA}, v{bA}')
I(f'v_add_u32 v{iB}, v{iB}, v{bB}')
I(f'ds_write_b32 v{vT0}, v{iA} offset:{OFFS_A}')
I(f'ds_write_b32 v{vT0}, v{iB} offset:{OFFS_A+256}')
I(f's_mov_b32 s{sMyLen}, s{sLen0}')
I(f's_mov_b32 s{sMyBase}, s{sBase0}')
for w in range(1, 8):
    I(f's_cmp_eq_u32 s{sWave}, {w}')
    I(f's_cselect_b32 s{sMyLen}, s{sLen0+w}, s{sMyLen}')
    I(f's_cselect_b32 s{sMyBase}, s{sBase0+w}, s{sMyBase}')
I('s_waitcnt lgkmcnt(0)')
for it in range(6):
    I(f's_mov_b64 exec, s[{sMask+2*it}:{sMask+2*it+1}]')
    I(f's_cbranch_execz K2_SC{it}')
    I(f'ds_read_b32 v{vT0}, v{REC_K+it} offset:{OFFS_A}')
    I('s_waitcnt lgkmcnt(0)')
    I(f'v_add_u32 v{vT0}, v{vT0}, v{REC_R+it}')
    I(f'v_lshrrev_b32 v{vT1}, 4, v{vT0}')
    I(f'v_mul_u32_u24 v{vT1}, {BLKSZ}, v{vT1}')
    I(f'v_and_b32 v{vT0}, 15, v{vT0}')
    I(f'v_lshl_add_u32 v{vT2}, v{vT0}, 5, v{vT1}')
    I(f'ds_write_b64 v{vT2}, v[{REC_P+4*it}:{REC_P+4*it+1}] offset:{BLK_A+T_O}')
    I(f'v_lshl_add_u32 v{vT2}, v{vT0}, 3, v{vT1}')
    I(f'ds_write_b64 v{vT2}, v[{REC_P+4*it+2}:{REC_P+4*it+3}] offset:{BLK_A+EF_O}')
    I(f'v_lshl_add_u32 v{vT2}, v{vT0}, 2, v{vT1}')
    I(f'ds_write_b32 v{vT2}, v{REC_M+it} offset:{BLK_A+IDX_O}')
    I(f'v_lshrrev_b32 v{vT2}, 3, v{vT0}')
    I(f'v_lshl_add_u32 v{vT2}, v{vT2}, 2, v{vT1}')
    I(f'v_and_b32 v{vT0}, 7, v{vT0}')
    I(f'v_lshlrev_b32 v{vT0}, 2, v{vT0}')
    I(f'v_lshlrev_b32 v{vT0}, v{vT0}, v{REC_S+it}')
    I(f'ds_or_b32 v{vT2}, v{vT0} offset:{BLK_A+SLOT_O}')
    L(f'K2_SC{it}:')
I('s_mov_b64 exec, -1')
I('s_waitcnt lgkmcnt(0)')
I('s_barrier')
stamp(5, sWS, sStamp)
I(f's_and_b32 s{sTmp}, s{sWave}, 3')
I(f's_lshl_b32 s{sTmp}, s{sTmp}, 13')
I(f'v_lshl_add_u32 v{vT0}, v{vLane}, 4, s{sTmp}')
for q in range(8):
    if q * 1024 < 4096:
        I(f'buffer_load_dwordx4 v[{WF+4*q}:{WF+4*q+3}], v{vT0}, s[{SRD_WF}:{SRD_WF+3}], 0 offen offset:{q*1024}')
    else:
        if q == 4:
            I(f'v_add_u32 v{vT1}, 4096, v{vT0}')
        I(f'buffer_load_dwordx4 v[{WF+4*q}:{WF+4*q+3}], v{vT1}, s[{SRD_WF}:{SRD_WF+3}], 0 offen offset:{q*1024-4096}')
I(f's_cmp_eq_u32 s{sMyLen}, 0')
I('s_cbranch_scc1 K2_ROUND_END')
I(f's_lshr_b32 s{sTmp}, s{sMyBase}, 4')
I(f's_mul_i32 s{sTmp}, s{sTmp}, {BLKSZ}')
I(f's_add_u32 s{sTmp}, s{sTmp}, {BLK_A}')
vTr, vTw = vT0, vT1
I(f'v_lshrrev_b32 v{vT2}, 4, v{vLane}')
I(f'v_and_b32 v{vT3}, 15, v{vLane}')
I(f'v_lshlrev_b32 v{vT3}, 5, v{vT3}')
I(f'v_mul_u32_u24 v{vTr}, {BLKSZ}, v{vT2}')
I(f'v_add3_u32 v{vTr}, v{vTr}, v{vT3}, s{sTmp}')
I(f'v_lshl_add_u32 v{vTw}, v{vT2}, 3, v{vT3}')
I(f'v_add_u32 v{vTw}, s{sTmp}, v{vTw}')
I(f'v_mov_b32 v{vBlk}, s{sTmp}')
I(f'v_lshlrev_b32 v{vL8}, 3, v{vLane}')
I(f'v_add_u32 v{vL8}, s{sTmp}, v{vL8}')
I(f's_add_u32 s{sRem}, s{sMyLen}, 15')
I(f's_lshr_b32 s{sRem}, s{sRem}, 4')
L('K2_TPASS:')
I(f'ds_read_b64 v[{TPY}:{TPY+1}], v{vTr}')
I('s_waitcnt lgkmcnt(0)')
I(f'v_mfma_f32_16x16x4_4b_bf16 v[{TPD}:{TPD+15}], v[{CGA}:{CGA+1}], v[{TPY}:{TPY+1}], 0')
I(f'v_add_u32 v{vTr}, {4*BLKSZ}, v{vTr}')
I('s_nop 7')
I('s_nop 3')
for k in range(8):
    I(f'v_pk_mul_f32 v[{TPD+2*k}:{TPD+2*k+1}], v[{TPD+2*k}:{TPD+2*k+1}], s[{sNln2}:{sNln2+1}]')
for k in range(8):
    I(f'v_cvt_pk_bf16_f32 v{TPP+k}, v{TPD+2*k}, v{TPD+2*k+1}')
for b in range(4):
    if b > 0:
        I(f's_cmp_le_u32 s{sRem}, {b}')
        I('s_cbranch_scc1 K2_TDONE')
    I(f'ds_write_b64 v{vTw}, v[{TPP+2*b}:{TPP+2*b+1}] offset:{b*BLKSZ}')
I(f'v_add_u32 v{vTw}, {4*BLKSZ}, v{vTw}')
I(f's_sub_u32 s{sRem}, s{sRem}, 4')
I(f's_cmp_gt_u32 s{sRem}, 0')
I('s_cbranch_scc1 K2_TPASS')
L('K2_TDONE:')
I('s_waitcnt lgkmcnt(0)')
stamp(6, sWS, sStamp)

def Xs(s): return XR + 4 * (s % NX)
def Ps(s): return PAIR + 2 * (s % 16)
def TPs(s): return TP + 8 * (s % 2)
def Yreg(g, par, e): return YY + 8 * (g % 2) + 4 * par + e
def Sp(p): return ES + 2 * (p % 2)
def idx_off(s):
    return (s // 16) * BLKSZ + IDX_O + (s % 16) * 4

class Op:
    def __init__(s, text, vm=None, lg=None, wait_vm=None, wait_lg=None):
        s.text, s.vm, s.lg, s.wait_vm, s.wait_lg = text, vm, lg, wait_vm, wait_lg

def pair_of_step(s):
    return ((s - 1) // 4 + 1, (s - 1) % 4)
def pair_regs(g, k):
    par, e0 = k % 2, (k // 2) * 2
    return Yreg(g, par, e0)

def rm(g, par, lo):
    y = Yreg(g, par, 0)
    w = WB + 4 * par + (2 if lo else 0)
    c = f'v[{y}:{y+3}]' if lo else '0'
    return f'v_mfma_f32_4x4x4_16b_bf16 v[{y}:{y+3}], v[{EF}:{EF+1}], v[{w}:{w+1}], {c} cbsz:4 abid:{g % 4}'

def step_ops(s):
    r = s % 16
    ops = []
    A = ops.append
    x = Xs(s + 1); tp = TPs(s + 1)
    g1, k1 = pair_of_step(s)
    g2, k2 = pair_of_step(s - 1)
    y1 = pair_regs(g1, k1); y2 = pair_regs(g2, k2)
    s1 = Sp(s); s2 = Sp(s - 1)
    A(Op(None, wait_vm=('X', s + 1), wait_lg=(('T', (s + 1) // 16) if r == 15 else None)))
    A(Op(f'v_mfma_f32_4x4x4_16b_bf16 v[{tp}:{tp+3}], v[{TT}:{TT+1}], v[{x}:{x+1}], 0 cbsz:4 abid:{(r+1)%16}'))
    A(Op(f'v_exp_f32 v{s1}, v{y1}'))
    A(Op(f'v_mfma_f32_4x4x4_16b_bf16 v[{tp+4}:{tp+7}], v[{TT}:{TT+1}], v[{x+2}:{x+3}], 0 cbsz:4 abid:{(r+1)%16}'))
    A(Op(f'v_exp_f32 v{s1+1}, v{y1+1}'))
    gn = s // 4 + 1
    if r % 4 == 0:
        if r == 12:
            A(Op(None, wait_lg=('EF', (s + 4) // 16)))
        A(Op(rm(gn, 0, False)))
    A(Op(f'v_rcp_f32 v{s2}, v{s2}'))
    if r % 4 == 0:
        A(Op(rm(gn, 1, False)))
    A(Op(f'v_rcp_f32 v{s2+1}, v{s2+1}'))
    A(Op(None, wait_lg=('I', s + 1 + NX)))
    p = Ps(s + 1 + NX)
    A(Op(f'buffer_load_dwordx4 v[{x}:{x+3}], v[{p}:{p+1}], s[{SRD_X}:{SRD_X+3}], 0 idxen offen', vm=('X', s + 1 + NX)))
    q = s + 1 + NX + LA
    A(Op(f'ds_read_b32 v{Ps(q)}, v{vBlk} offset:{idx_off(r + 1 + NX + LA)}', lg=('I', q)))
    if r == 14:
        A(Op(f'ds_read_b64 v[{TT}:{TT+1}], v{vL8} offset:{BLKSZ+T_O}', lg=('T', s // 16 + 1)))
    if r == 9:
        A(Op(f'ds_read_b64 v[{EF}:{EF+1}], v{vL8} offset:{BLKSZ+EF_O}', lg=('EF', s // 16 + 1)))
        A(Op(f'ds_read_b32 v{vSl}, v{vBlk} offset:{BLKSZ+SLOT_O}', lg=('S0', s // 16 + 1)))
    if r == 1:
        A(Op(f'ds_read_b32 v{vSl+1}, v{vBlk} offset:{SLOT_O+4}', lg=('S1', s // 16)))
    A(Op(f'v_pk_add_f32 v[{s1}:{s1+1}], v[{s1}:{s1+1}], s[{sOne}:{sOne+1}]'))
    if CFG['HILO'] and r % 4 == 0:
        A(Op(rm(gn, 0, True)))
    A(Op(f'v_pk_mul_f32 v[{y2}:{y2+1}], v[{y2}:{y2+1}], v[{s2}:{s2+1}]'))
    if CFG['HILO'] and r % 4 == 0:
        A(Op(rm(gn, 1, True)))
    g0, e0 = s // 4, s % 4
    sl = sSl0 if r < 8 else sSl1
    A(Op(f's_bfe_u32 s{sTmp}, s{sl}, {hex(((r % 8) * 4) | (4 << 16))}'))
    A(Op(f's_set_gpr_idx_on s{sTmp}, 0xc'))
    tpc = TPs(s)
    for qq in range(4):
        par, h = qq // 2, qq % 2
        rr = Yreg(g0, par, e0)
        base = rr & ~1
        sel = rr & 1
        a = ACC + 10 * qq
        d = tpc + 4 * par + 2 * h
        mods = 'op_sel_hi:[1,0,1]' if sel == 0 else 'op_sel:[0,1,0] op_sel_hi:[1,1,1]'
        A(Op(f'v_pk_fma_f32 v[{a}:{a+1}], v[{d}:{d+1}], v[{base}:{base+1}], v[{a}:{a+1}] {mods}'))
    A(Op('s_set_gpr_idx_off'))
    if r == 3:
        A(Op(None, wait_lg=('S1', s // 16)))
        A(Op(f'v_readfirstlane_b32 s{sSl1}, v{vSl+1}'))
    if r == 11:
        A(Op(None, wait_lg=('S0', s // 16 + 1)))
        A(Op(f'v_readfirstlane_b32 s{sSl0}, v{vSl}'))
    if r == 15:
        A(Op(f'v_add_u32 v{vBlk}, {BLKSZ}, v{vBlk}'))
        A(Op(f'v_add_u32 v{vL8}, {BLKSZ}, v{vL8}'))
    if r % 4 == 3:
        A(Op(f's_sub_i32 s{sRem}, s{sRem}, 4'))
        A(Op(f's_cmp_le_i32 s{sRem}, 0'))
        A(Op('s_cbranch_scc1 K2_MAIN_DONE'))
    return ops

def resolve(nit=3):
    seq = []
    for s in range(16 * nit):
        for o in step_ops(s):
            seq.append((s, o))
    res = {}
    for i, (s, o) in enumerate(seq):
        if o.text is None:
            w = {}
            for cls, tag in (('vm', o.wait_vm), ('lg', o.wait_lg)):
                if tag is None: continue
                j = None
                for jj in range(i - 1, -1, -1):
                    if getattr(seq[jj][1], cls) == tag:
                        j = jj; break
                if j is None:
                    w[cls] = None
                else:
                    w[cls] = sum(1 for jj in range(j + 1, i) if getattr(seq[jj][1], cls) is not None)
            res[i] = w
    return seq, res

_step_ops = step_ops
def step_ops(s):
    ops = _step_ops(s)
    drop = CFG['DROP'].split(',')
    r = []
    for o in ops:
        t = o.text or ''
        if 'vmem' in drop and (t.startswith('buffer_load') ): continue
        if 'vmem' in drop and o.text is None and o.wait_vm is not None:
            o.wait_vm = None
        if 'ldsi' in drop and t.startswith('ds_read_b32') and o.lg and o.lg[0] == 'I': continue
        if 'ldsi' in drop and o.text is None and o.wait_lg is not None and o.wait_lg[0] == 'I': continue
        if 'gidx' in drop and (t.startswith('s_set_gpr') or t.startswith('s_bfe')): continue
        if 'acc' in drop and t.startswith('v_pk_fma'): continue
        if 'tp' in drop and t.startswith('v_mfma') and f'v[{TT}:{TT+1}]' in t: continue
        if 'rm' in drop and t.startswith('v_mfma') and f'v[{EF}:{EF+1}]' in t: continue
        if 'trans' in drop and (t.startswith('v_exp') or t.startswith('v_rcp')): continue
        if 'pk2' in drop and (t.startswith('v_pk_add') or t.startswith('v_pk_mul')): continue
        r.append(o)
    return r
seq, res = resolve(3)
n_per = len(seq) // 3
body = []
for i in range(n_per, 2 * n_per):
    s, o = seq[i]
    if o.text is not None:
        body.append(o.text)
    else:
        w = res[i]; w3 = res[i + n_per]
        assert w == w3, (s, w, w3)
        parts = []
        if 'vm' in w: parts.append(f'vmcnt({w["vm"]})')
        if 'lg' in w: parts.append(f'lgkmcnt({w["lg"]})')
        if parts:
            for k, v in w.items():
                assert v is not None and v <= (63 if k == 'vm' else 15), (s, w)
            body.append('s_waitcnt ' + ' '.join(parts))

C_('main loop prologue')
I(f's_add_u32 s{sRem}, s{sMyLen}, 3')
I(f's_and_b32 s{sRem}, s{sRem}, 0xfffffffc')
I(f'v_lshlrev_b32 v{vT0}, 4, v{vLane}')
for k in range(16):
    I(f'v_mov_b32 v{PAIR+2*k+1}, v{vT0}')
for k in range(16):
    I(f'ds_read_b32 v{Ps(k)}, v{vBlk} offset:{idx_off(k)}')
I(f'ds_read_b64 v[{TT}:{TT+1}], v{vL8} offset:{T_O}')
I(f'ds_read_b64 v[{EF}:{EF+1}], v{vL8} offset:{EF_O}')
I(f'ds_read_b32 v{vSl}, v{vBlk} offset:{SLOT_O}')
I('s_waitcnt lgkmcnt(0)')
for k in range(NX):
    I(f'buffer_load_dwordx4 v[{Xs(k)}:{Xs(k)+3}], v[{Ps(k)}:{Ps(k)+1}], s[{SRD_X}:{SRD_X+3}], 0 idxen offen')
for k in range(16, NX + 1 + LA):
    I(f'ds_read_b32 v{Ps(k)}, v{vBlk} offset:{idx_off(k)}')
I(f'v_readfirstlane_b32 s{sSl0}, v{vSl}')
I(rm(0, 0, False)); I(rm(0, 1, False))
if CFG['HILO']:
    I('s_nop 1')
    I(rm(0, 0, True)); I(rm(0, 1, True))
I('s_nop 4')
for k in (0, 1):
    y = pair_regs(0, k); t = ES + 4
    I(f'v_exp_f32 v{t}, v{y}'); I(f'v_exp_f32 v{t+1}, v{y+1}')
    I('s_nop 0')
    I(f'v_pk_add_f32 v[{t}:{t+1}], v[{t}:{t+1}], s[{sOne}:{sOne+1}]')
    I(f'v_rcp_f32 v{t}, v{t}'); I(f'v_rcp_f32 v{t+1}, v{t+1}')
    I('s_nop 0')
    I(f'v_pk_mul_f32 v[{y}:{y+1}], v[{y}:{y+1}], v[{t}:{t+1}]')
y = pair_regs(0, 2); t = Sp(-1)
assert pair_of_step(-1) == (0, 2)
I(f'v_exp_f32 v{t}, v{y}'); I(f'v_exp_f32 v{t+1}, v{y+1}')
I('s_nop 0')
I(f'v_pk_add_f32 v[{t}:{t+1}], v[{t}:{t+1}], s[{sOne}:{sOne+1}]')
I(f's_waitcnt vmcnt({NX-1}) lgkmcnt(0)')
x = Xs(0); tp = TPs(0)
I(f'v_mfma_f32_4x4x4_16b_bf16 v[{tp}:{tp+3}], v[{TT}:{TT+1}], v[{x}:{x+1}], 0 cbsz:4 abid:0')
I(f'v_mfma_f32_4x4x4_16b_bf16 v[{tp+4}:{tp+7}], v[{TT}:{TT+1}], v[{x+2}:{x+3}], 0 cbsz:4 abid:0')
p = Ps(NX)
I(f'buffer_load_dwordx4 v[{x}:{x+3}], v[{p}:{p+1}], s[{SRD_X}:{SRD_X+3}], 0 idxen offen')
if CFG['FIXLEN']:
    I(f's_mov_b32 s{sRem}, {CFG["FIXLEN"]}')
    I('s_barrier')
stamp(7, sWS, sStamp)
L('.p2align 6')
L('K2_MAIN:')
for t in body:
    I(t)
I('s_branch K2_MAIN')
L('K2_MAIN_DONE:')
I('s_waitcnt vmcnt(0) lgkmcnt(0)')
L('K2_ROUND_END:')
stamp(8, sWS, sStamp)
I(f's_lshl_b32 s{sTmp}, s{sK4}, 2')
I(f's_add_u32 s{sRbase}, s{sRbase}, s{sTmp}')
I(f's_cmp_ge_u32 s{sRbase}, s{sMaxC}')
I('s_cbranch_scc1 K2_EPI')
I('s_barrier')
I('s_branch K2_ROUND')

L('K2_EPI:')
I(f's_mul_i32 s{sTmp}, s{sWave}, {4*AGG_STR}')
I(f's_add_u32 s{sTmp}, s{sTmp}, {AGG_A}')
I(f'v_lshl_add_u32 v{vT0}, v{vLane}, 2, s{sTmp}')
pk = XR
for sl in range(5):
    for m in range(4):
        ae = ACC + 10 * (m // 2) + 2 * sl + (m % 2)
        ao = ACC + 10 * (2 + m // 2) + 2 * sl + (m % 2)
        I(f'v_cvt_pk_bf16_f32 v{pk + sl*4 + m}, v{ae}, v{ao}')
for sl in range(5):
    for m in range(4):
        I(f'ds_write_b32 v{vT0}, v{pk + sl*4 + m} offset:{(sl*32 + m) * AGG_STR}')
I('s_waitcnt vmcnt(0) lgkmcnt(0)')
I('s_barrier')
stamp(9, sWS, sStamp)
I(f's_lshr_b32 s{sA}, s{sWave}, 2')
I(f's_mul_i32 s{sTmp}, s{sA}, {5*16*AGG_STR}')
I(f's_add_u32 s{sTmp}, s{sTmp}, {AGG_A}')
I(f'v_and_b32 v{vT1}, 15, v{vLane}')
I(f'v_mul_u32_u24 v{vT0}, {AGG_STR}, v{vT1}')
I(f'v_lshrrev_b32 v{vT2}, 4, v{vLane}')
I(f'v_lshl_add_u32 v{vT0}, v{vT2}, 4, v{vT0}')
I(f'v_add_u32 v{vT0}, s{sTmp}, v{vT0}')
I(f's_mul_i32 s{sTmp}, s{sA}, 20')
I(f's_add_u32 s{sTmp}, s{sTmp}, s{sN0}')
I(f's_lshl_b32 s{sTmp}, s{sTmp}, 10')
I(f's_and_b32 s{sTmp2}, s{sWave}, 3')
I(f's_lshl_b32 s{sTmp2}, s{sTmp2}, 8')
I(f's_add_u32 s{sTmp}, s{sTmp}, s{sTmp2}')
I(f'v_lshlrev_b32 v{vT2}, 10, v{vT2}')
I(f'v_lshl_add_u32 v{vT2}, v{vT1}, 4, v{vT2}')
I(f'v_add_u32 v{vT2}, s{sTmp}, v{vT2}')
AF = XR
DD = PAIR
OP = PAIR + 16
def a_reads(i):
    b = AF + 16 * (i % 2)
    for ks in range(4):
        I(f'ds_read_b128 v[{b+4*ks}:{b+4*ks+3}], v{vT0} offset:{i*16*AGG_STR + ks*64}')
a_reads(0)
for i in range(5):
    if i + 1 < 5:
        a_reads(i + 1)
        I('s_waitcnt lgkmcnt(4)')
    else:
        I('s_waitcnt lgkmcnt(0)')
    b = AF + 16 * (i % 2)
    d = DD + 8 * (i % 2)
    for ks in range(4):
        for t in range(2):
            w = WF + 4 * (t * 4 + ks)
            c = '0' if ks == 0 else f'v[{d+4*t}:{d+4*t+3}]'
            I(f'v_mfma_f32_16x16x32_bf16 v[{d+4*t}:{d+4*t+3}], v[{b+4*ks}:{b+4*ks+3}], v[{w}:{w+3}], {c}')
    I('s_nop 7')
    o = OP + 4 * (i % 2)
    I(f'v_cvt_pk_bf16_f32 v{o}, v{d}, v{d+1}')
    I(f'v_cvt_pk_bf16_f32 v{o+1}, v{d+2}, v{d+3}')
    I(f'v_cvt_pk_bf16_f32 v{o+2}, v{d+4}, v{d+5}')
    I(f'v_cvt_pk_bf16_f32 v{o+3}, v{d+6}, v{d+7}')
    if i > 0:
        I(f'v_add_u32 v{vT2}, 4096, v{vT2}')
    I(f'buffer_store_dwordx4 v[{o}:{o+3}], v{vT2}, s[{SRD_OUT}:{SRD_OUT+3}], 0 offen')
    I('s_nop 1')
stamp(10, sWS, sStamp)
if CFG['STAMP']:
    I('s_waitcnt vmcnt(0)')
stamp(11, sWS, sStamp)
L('K2_END:')
I('s_endpgm')

L('.section .rodata,"a"')
for name, nv, ns in (('tfn_sort_kernel', 72 if CFG['STAMP'] else 64, 40), ('tfn_main_kernel', 256, 96)):
    L('.p2align 6')
    L(f'.amdhsa_kernel {name}')
    L(f'  .amdhsa_next_free_vgpr {nv}')
    L(f'  .amdhsa_next_free_sgpr {ns}')
    L(f'  .amdhsa_accum_offset {nv}')
    L('  .amdhsa_group_segment_fixed_size 0')
    L('  .amdhsa_kernarg_size 88')
    L('  .amdhsa_user_sgpr_count 2')
    L('  .amdhsa_user_sgpr_kernarg_segment_ptr 1')
    L('  .amdhsa_system_sgpr_workgroup_id_x 1')
    L('  .amdhsa_float_denorm_mode_32 3')
    L('.end_amdhsa_kernel')

out[hdr_pos] = f'; @launch kernel=tfn_sort_kernel grid=({G},1,1) block=(640,1,1) lds={K1_LDS}'
out[hdr_pos + 1] = f'; @launch kernel=tfn_main_kernel grid=({NBIN},1,1) block=(512,1,1) lds={K2_LDS}'
open(sys.argv[1], 'w').write('\n'.join(out) + '\n')
print('VGPRs used', NV, 'K2 LDS', K2_LDS, 'MMAX', MMAX, 'lines', len(out))
```
